```python
import torch

def _softmax(x, axis=-1):
    return torch.softmax(x, dim=axis)
def _gelu(x):
    return torch.nn.functional.gelu(x, approximate="tanh")
def _silu(x):
    return torch.nn.functional.silu(x)
def _sigmoid(x):
    return torch.sigmoid(x)
def _layernorm(x, axis=-1, eps=1e-5):
    m = x.mean(dim=axis, keepdim=True)
    v = x.var(dim=axis, keepdim=True, unbiased=False)
    return (x - m) / torch.sqrt(v + eps)
def _scatter_add(tgt, idx, src, axis=0):
    return tgt.clone().index_add_(axis, idx, src)
def _segment_sum(src, seg, n):
    out = torch.zeros((n,) + src.shape[1:], dtype=src.dtype)
    return out.index_add_(0, seg, src)
def _pad(x, pw):
    flat = tuple(v for pair in reversed(pw) for v in pair)
    return torch.nn.functional.pad(x, flat)

kernel_name = 'gated_mix__linear_kernel_hedgehog__glu_gated_swiglu__prompt'

def setup_inputs():

    _w = (lambda a: (lambda t: t.to(torch.bfloat16) if t.is_floating_point() else t)(torch.as_tensor(a)))
    def _A_setup():
        B, S, D, H = 1, 2048, 448, 16
        Dh = D // H
        return {
            "x": _w((lambda *s: torch.randn(*s, dtype=torch.bfloat16) * 0.05)(B, S, D)),
            "wqkv": _w((lambda *s: torch.randn(*s, dtype=torch.bfloat16) * 0.8)(D, 3 * D)),
            "w_phi": _w((lambda *s: torch.randn(*s, dtype=torch.bfloat16) * 0.8)(H, Dh, Dh) * (Dh ** -0.5)),
            "wo": _w((lambda *s: torch.randn(*s, dtype=torch.bfloat16) * 0.05)(D, D)),
        }
    _A_in = _A_setup()

    def _B_setup():
        B, S, D, F = 1, 2048, 448, 1792
        return {
            "x": _w((lambda *s: torch.randn(*s, dtype=torch.bfloat16) * 0.05)(B, S, D)),
            "w1": _w((lambda *s: torch.randn(*s, dtype=torch.bfloat16) * 1.6)(D, F) * (2.0 / D) ** 0.5),
            "w3": _w((lambda *s: torch.randn(*s, dtype=torch.bfloat16) * 1.6)(D, F) * (2.0 / D) ** 0.5),
            "w2": _w((lambda *s: torch.randn(*s, dtype=torch.bfloat16) * 1.6)(F, D) * (2.0 / F) ** 0.5),
        }
    _B_in = _B_setup()

    return {
        "A_x": _A_in["x"],
        "A_wqkv": _A_in["wqkv"],
        "A_w_phi": _A_in["w_phi"],
        "A_wo": _A_in["wo"],
        "B_x": _B_in["x"],
        "B_w1": _B_in["w1"],
        "B_w3": _B_in["w3"],
        "B_w2": _B_in["w2"],
        "gate_w": _w((lambda *s: torch.randn(*s, dtype=torch.bfloat16) * 0.05)(448) * 16.0),
    }

def reference(A_x, A_wqkv, A_w_phi, A_wo, B_x, B_w1, B_w3, B_w2, gate_w):
    def _A_ref(x, wqkv, w_phi, wo):
        B, S, D = x.shape
        H = 16; Dh = D // H
        qkv = (lambda x, *d: x.permute(*d))((x @ wqkv).reshape(B, S, 3, H, Dh), 2, 0, 3, 1, 4)
        q, k, v = qkv[0], qkv[1], qkv[2]
        pq = torch.einsum("bhsd,hdf->bhsf", q, w_phi)
        pk = torch.einsum("bhsd,hdf->bhsf", k, w_phi)
        phi_q = torch.concatenate([_softmax(pq, axis=-1), _softmax(-pq, axis=-1)], axis=-1)
        phi_k = torch.concatenate([_softmax(pk, axis=-1), _softmax(-pk, axis=-1)], axis=-1)
        kv = torch.einsum("bhsf,bhsd->bhfd", phi_k, v)
        z  = torch.einsum("bhsf->bhf", phi_k)
        num = torch.einsum("bhqf,bhfd->bhqd", phi_q, kv)
        den = torch.einsum("bhqf,bhf->bhq", phi_q, z)[..., None] + 1e-6
        o = num / den
        return (lambda x, *d: x.permute(*d))(o, 0, 2, 1, 3).reshape(B, S, D) @ wo

    def _B_ref(x, w1, w3, w2):
        gate = torch.einsum("bsd,df->bsf", x, w1)
        up = torch.einsum("bsd,df->bsf", x, w3)
        h = _silu(gate) * up
        out = torch.einsum("bsf,fd->bsd", h, w2)
        return out

    x = A_x
    g = _sigmoid((x * gate_w).sum(-1, keepdims=True))
    a = _A_ref(x, A_wqkv, A_w_phi, A_wo)
    b = _B_ref(x, B_w1, B_w3, B_w2)
    return g * a + (1 - g) * b
```

```python
import re

_REG = re.compile(r"(?<![\w.])(?:([vs])\[(\d+):(\d+)\]|([vs])(\d+)(?![\w])|(vcc|exec|m0)(?![\w]))")
TRANS = ("v_exp_f32", "v_log_f32", "v_rcp_f32", "v_rsq_f32", "v_sqrt_f32", "v_sin_f32", "v_cos_f32")


def regs_of(op):
    out = set()
    for m in _REG.finditer(op):
        if m.group(1):
            out.update((m.group(1), i) for i in range(int(m.group(2)), int(m.group(3)) + 1))
        elif m.group(4):
            out.add((m.group(4), int(m.group(5))))
        else:
            out.add((m.group(6), 0))
    return out


def split_ops(s):
    ops, depth, cur = [], 0, ""
    for ch in s:
        if ch in "[(":
            depth += 1
        elif ch in "])":
            depth -= 1
        if ch == "," and depth == 0:
            ops.append(cur.strip())
            cur = ""
        else:
            cur += ch
    if cur.strip():
        ops.append(cur.strip())
    return ops


class I:
    def __init__(self, text, tag=None):
        self.text = text.strip()
        self.tag = tag
        self.r, self.w = set(), set()
        self.srcc = set()
        self.srcab = set()
        self.data = set()
        t = self.text
        if t.endswith(":"):
            self.kind, self.mn = "label", t
            return
        if t.startswith(";") or t.startswith("."):
            self.kind, self.mn = "note", t
            return
        if t.startswith("RAW "):
            self.text = t[4:]
            self.kind, self.mn = "note", t
            return
        parts = t.split(None, 1)
        mn = self.mn = parts[0]
        ops = split_ops(parts[1]) if len(parts) > 1 else []
        R = [regs_of(o) for o in ops]
        allr = set().union(*R) if R else set()
        rest = set().union(*R[1:]) if len(R) > 1 else set()
        if mn == "WAIT":
            self.kind = "pwait"
            self.tags = parts[1].split()
        elif mn == "DRAINED":
            self.kind = "pdrain"
            self.what = parts[1].split()
        elif mn.startswith("v_mfma"):
            self.kind = "mfma"
            self.w, self.r = R[0], rest
            self.srcab = R[1] | R[2]
            self.srcc = R[3]
            self.passes = 8 if "32x32" in mn else 4
        elif mn.startswith("buffer_load") or mn.startswith("global_load"):
            if re.search(r"\blds\b", t):
                self.kind = "dma"
                self.r = allr | {("m0", 0)}
            else:
                self.kind = "vload"
                self.w, self.r = R[0], rest
                if "d16" in mn:
                    self.merge = True
        elif mn.startswith("buffer_store") or mn.startswith("buffer_atomic"):
            self.kind = "vstore"
            self.r = allr
            if "x4" in mn or "x3" in mn:
                self.data = R[0]
        elif mn.startswith("ds_read"):
            self.kind = "dsread"
            self.w, self.r = R[0], rest
        elif mn.startswith("ds_"):
            self.kind = "dswrite"
            self.r = allr
        elif mn.startswith("v_permlane"):
            self.kind = "valu"
            self.w, self.r = allr, allr
        elif mn.startswith("v_"):
            self.kind = "trans" if mn.replace("_e32", "").replace("_e64", "") in TRANS else "valu"
            self.w, self.r = R[0], rest
            if mn.startswith("v_fmac") or mn.startswith("v_dot2c"):
                self.r = allr
        elif mn in ("s_barrier", "s_endpgm", "s_nop", "s_sleep", "s_setprio", "s_waitcnt"):
            self.kind = {"s_barrier": "barrier", "s_waitcnt": "wait"}.get(mn, "misc")
        elif mn.startswith("s_cbranch") or mn == "s_branch":
            self.kind = "branch"
            if "vcc" in mn:
                self.r = {("vcc", 0)}
        elif mn.startswith("s_load") or mn in ("s_memtime", "s_memrealtime"):
            self.kind = "smem"
            self.w, self.r = R[0], rest
        elif mn.startswith("s_cmp") or mn.startswith("s_bitcmp"):
            self.kind = "salu"
            self.r = allr
        elif mn.startswith("s_"):
            self.kind = "salu"
            self.w, self.r = R[0], rest
            if "saveexec" in mn:
                self.w = self.w | {("exec", 0)}
        else:
            raise ValueError("unknown instruction: " + t)

    def states(self):
        if self.kind in ("label", "note", "pwait", "pdrain"):
            return 0
        if self.mn == "s_nop":
            return int(self.text.split()[1], 0) + 1
        return 1

    def is_valu(self):
        return self.kind in ("valu", "trans")

    def is_vmem(self):
        return self.kind in ("vload", "vstore", "dma")


class S(list):
    def __call__(self, text, tag=None):
        for line in text.strip().split("\n"):
            line = line.strip()
            if line:
                self.append(I(line, tag))
        return self

    def add(self, other):
        self.extend(other)
        return self


def weave(main, fill, start=0, end=None, is_slot=lambda i: i.kind == "mfma"):
    groups = [g if isinstance(g, list) else [g] for g in fill]
    slots = [k for k, ins in enumerate(main) if is_slot(ins)]
    slots = slots[start:end]
    out = S()
    if not slots:
        out.add(main)
        for g in groups:
            out.add(g)
        return out
    after = {k: [] for k in slots}
    n, m = len(groups), len(slots)
    for j, g in enumerate(groups):
        after[slots[min(m - 1, j * m // max(n, 1))]].extend(g)
    for k, ins in enumerate(main):
        out.append(ins)
        if k in after:
            out.extend(after[k])
    return out


def insert_waits(code):
    out = S()
    vm, lg = [], []

    def need(q, pred):
        best = None
        for k, e in enumerate(q):
            if pred(e):
                best = len(q) - 1 - k
        return best

    def emit(nv, nl):
        parts = []
        if nv is not None:
            nv = min(nv, 63)
            parts.append(f"vmcnt({nv})")
            del vm[: len(vm) - nv]
        if nl is not None:
            if any(e.kind == "smem" for e in lg):
                nl = 0
            nl = min(nl, 15)
            parts.append(f"lgkmcnt({nl})")
            del lg[: len(lg) - nl]
        if parts:
            out.append(I("s_waitcnt " + " ".join(parts)))

    for ins in code:
        if ins.kind == "pwait":
            nv = need(vm, lambda e: e.tag in ins.tags or "vm*" in ins.tags)
            nl = need(lg, lambda e: e.tag in ins.tags or "lg*" in ins.tags)
            emit(nv, nl)
            continue
        if ins.kind == "pdrain":
            if "vm" in ins.what:
                vm.clear()
            if "lg" in ins.what:
                lg.clear()
            continue
        if ins.kind == "wait":
            m = re.search(r"vmcnt\((\d+)\)", ins.text)
            if m:
                del vm[: max(0, len(vm) - int(m.group(1)))]
            m = re.search(r"lgkmcnt\((\d+)\)", ins.text)
            if m and (int(m.group(1)) == 0 or not any(e.kind == "smem" for e in lg)):
                del lg[: max(0, len(lg) - int(m.group(1)))]
            out.append(ins)
            continue
        touched = ins.r | ins.w
        if touched:
            merge = getattr(ins, "merge", False)
            nv = need(vm, lambda e: bool(e.w & (ins.r if (merge and getattr(e, "merge", False)) else touched)))
            nl = need(lg, lambda e: bool(e.w & touched))
            emit(nv, nl)
        out.append(ins)
        if ins.is_vmem():
            vm.append(ins)
        elif ins.kind in ("dsread", "dswrite", "smem"):
            lg.append(ins)
    return out


def _required(p, c):
    n = 0
    pv = {x for x in p.w if x[0] == "v"}
    ps = {x for x in p.w if x[0] in ("s", "vcc")}
    if p.is_valu():
        if c.kind == "mfma" and pv & c.r:
            n = max(n, 2)
        if c.mn.startswith("v_permlane") and pv & c.r:
            n = max(n, 2)
        if "dpp" in c.text and c.is_valu() and pv & c.r:
            n = max(n, 2)
        if (c.mn.startswith("v_readfirstlane") or c.mn.startswith("v_readlane")) and pv & c.r:
            n = max(n, 1)
        if p.kind == "trans" and (c.is_valu() or c.kind == "mfma") and pv & c.r:
            n = max(n, 1)
        if ("op_sel" in p.text or "sdwa" in p.text) and c.is_valu() and pv & (c.r | c.w):
            n = max(n, 1)
        if ps & c.r:
            if c.is_valu():
                n = max(n, 4 if "lane" in c.mn else 2)
            if c.is_vmem():
                n = max(n, 5)
            if c.kind in ("salu", "smem"):
                n = max(n, 2)
            if c.kind == "branch":
                n = max(n, 5)
        if ("exec", 0) in p.w:
            n = max(n, 5)
    if p.kind == "mfma":
        big = {8: 12, 4: 8}[p.passes]
        if c.kind == "mfma":
            if p.w & c.srcab:
                n = max(n, big)
            if p.w & c.srcc and not (p.w == c.srcc and p.passes == c.passes):
                n = max(n, big - 2)
            if p.w & c.w and not (p.w == c.srcc and p.passes == c.passes):
                n = max(n, big)
        elif p.w & (c.r | c.w):
            n = max(n, big)
        if c.kind != "mfma" and p.srcc & c.w:
            n = max(n, {8: 7, 4: 3}[p.passes])
    if p.kind == "salu" and ("m0", 0) in p.w and (c.kind == "dma" or "addtid" in c.mn):
        n = max(n, 1)
    if p.kind == "vstore" and p.data & c.w:
        n = max(n, 2)
    return n


def insert_nops(code):
    out = S()
    for ins in code:
        if ins.states() and ins.mn != "s_nop":
            dist, pad = 0, 0
            for p in reversed(out):
                if dist >= 20:
                    break
                req = _required(p, ins)
                if req > dist:
                    pad = max(pad, req - dist)
                dist += p.states()
            while pad > 0:
                k = min(pad, 16)
                out.append(I(f"s_nop {k - 1}"))
                pad -= k
        out.append(ins)
    return out


def finish(code):
    code = insert_nops(insert_waits(code))
    lines = []
    for ins in code:
        lines.append(ins.text if ins.kind == "label" else "    " + ins.text)
    return "\n".join(lines) + "\n"
```

```python
import sys
from asmlib import *

NAME = "gated_mix__linear_kernel_hedgehog__glu_gated_swiglu__prompt"
H_OFF, O_OFF, KVP_OFF, GC_OFF, WS_SIZE = 0, 0x700000, 0x900000, 0x980000, 0xA00000
HF_OFF, OF_OFF, KF_OFF, FL_END = 0x990000, 0x9AC000, 0x9B4000, 0x9C0000
ST_OFF = 0x9C0000
STAMPS = False
PREF = True
SPIN = 40000
L2E = "0x3fb8aa3b"
SL = [0, 98304, 49152]
XB = 98304
OOB = 0x4000000

pX, pQKV, pPHI, pWO, pW1, pW3, pW2, pGATE, pOUT, pDBG, pWS = 4, 6, 8, 10, 14, 16, 18, 20, 22, 24, 26
rX, rA, rB, rWS, rW2, rWO, rOUT, rG = 28, 32, 36, 40, 44, 48, 52, 44
sW, sXCD, sSLOT = 60, 61, 62
sT0, sT1, sT2, sT3 = 63, 64, 65, 66
sWoff, sXoff, sLw, sL2E, sHoff, sRNG, sGRP, sSo = 67, 68, 69, 70, 71, 72, 73, 74
sM0, sM1 = 76, 78
sTE, sTL, sCB = 80, 81, 82
sCnt, sFin, rD = 75, 3, 56
vFin, vOne, vRF, vRA = 30, 29, 28, 27
_lbl = [0]


def stamp(c, k):
    if STAMPS:
        c(f"s_memrealtime s[100:101]\ns_waitcnt lgkmcnt(0)\ns_mov_b32 s{89+k}, s100")


def poll_issue(c, vF, vA, r, soff, tag=None):
    c(f"buffer_load_dword v{vF}, v{vA}, {srd(r)}, {soff} offen sc1", tag)


def poll_check(c, vF, vA, r, soff):
    _lbl[0] += 1
    n = _lbl[0]
    c(f"""
    v_cmp_eq_u32 vcc, 0, v{vF}
    s_cbranch_vccz L_ok{n}
    RAW s_mov_b32 s{sCnt}, {SPIN}
    L_sp{n}:
    RAW s_sleep 2
    RAW buffer_load_dword v{vF}, v{vA}, {srd(r)}, {soff} offen sc1
    RAW s_waitcnt vmcnt(0)
    RAW v_cmp_eq_u32 vcc, 0, v{vF}
    RAW s_sub_u32 s{sCnt}, s{sCnt}, 1
    RAW s_cmp_eq_u32 s{sCnt}, 0
    RAW s_cbranch_scc1 L_ok{n}
    RAW s_nop 1
    RAW s_cbranch_vccnz L_sp{n}
    L_ok{n}:
    """)


def ready_issue(c, vF, vA):
    c(f"v_min_u32 v{vA}, 5, v0\nv_lshlrev_b32 v{vA}, 2, v{vA}")
    poll_issue(c, vF, vA, rD, "0")


def ready_check(c, vF, vA):
    poll_check(c, vF, vA, rD, "0")


def srd(r):
    return f"s[{r}:{r+3}]"


def vr(a, n=4):
    return f"v[{a}:{a+n-1}]" if n > 1 else f"v{a}"


def mk_srd(c, r, p, size):
    c(f"s_mov_b32 s{r}, s{p}\ns_mov_b32 s{r+1}, s{p+1}\ns_mov_b32 s{r+2}, {hex(size)}\ns_mov_b32 s{r+3}, 0x20000")


def sdiv(c, q, rem, src, d, maxv):
    for sh in range(4, 20):
        m = -(-(1 << sh) // d)
        if all((v * m) >> sh == v // d for v in range(maxv + 1)):
            break
    c(f"s_mul_i32 s{q}, s{src}, {m}\ns_lshr_b32 s{q}, s{q}, {sh}")
    if rem is not None:
        c(f"s_mul_i32 s{rem}, s{q}, {d}\ns_sub_u32 s{rem}, s{src}, s{rem}")


def mfma(d, a, b, first=False):
    cc = "0" if first else vr(d, 16)
    return I(f"v_mfma_f32_32x32x16_bf16 {vr(d,16)}, {vr(a)}, {vr(b)}, {cc}")


def dma(vaddr, r, sbase, soff, ldsoff, tag, mask=None):
    g = S()
    g(f"s_add_u32 m0, s{sLw}, {ldsoff}\ns_add_u32 s{sSo}, s{sbase}, {soff}")
    if mask is not None:
        g(f"s_mov_b64 exec, s[{mask}:{mask+1}]")
    g(f"buffer_load_dwordx4 v{vaddr}, {srd(r)}, s{sSo} offen lds", tag)
    if mask is not None:
        g("s_mov_b64 exec, -1")
    return g


def head(c, end):
    c(f"""
    s_cmp_ge_u32 s2, 256
    s_cbranch_scc1 {end}
    s_load_dwordx16 s[4:19], s[0:1], 0
    s_load_dwordx8 s[20:27], s[0:1], 64
    v_lshrrev_b32 v1, 6, v0
    v_and_b32 v0, 63, v0
    v_readfirstlane_b32 s{sW}, v1
    s_and_b32 s{sXCD}, s2, 7
    s_lshr_b32 s{sSLOT}, s2, 3
    s_mov_b32 s{sL2E}, {L2E}
    """)
    if PREF:
        c(f"""
        s_getpc_b64 s[{rWO}:{rWO+1}]
        s_and_b32 s{rWO}, s{rWO}, 0xffffff00
        s_mov_b32 s{rWO+2}, L_code_end-{NAME}_kernel
        s_mov_b32 s{rWO+3}, 0x20000
        s_and_b32 s{sT0}, s{sSLOT}, 7
        s_lshl_b32 s{sT0}, s{sT0}, 3
        s_add_u32 s{sT0}, s{sT0}, s{sW}
        s_mul_i32 s{sT0}, s{sT0}, 640
        v_min_u32 v2, 4, v0
        v_lshlrev_b32 v2, 7, v2
        buffer_load_dword v31, v2, {srd(rWO)}, s{sT0} offen
        """)
    c(f"""
    v_mov_b32 v{vOne}, 1
    v_cmp_eq_u32 vcc, 0, v0
    v_mov_b32 v{vFin}, {hex(OOB)}
    v_cndmask_b32 v{vFin}, v{vFin}, v0, vcc
    s_waitcnt lgkmcnt(0)
    """)
    stamp(c, 0)
    mk_srd(c, rD, pDBG, 256)
    mk_srd(c, rX, pX, 2048 * 896)
    mk_srd(c, rWS, pWS, WS_SIZE)
    c(f"s_lshl_b32 s{sLw}, s{sW}, 10")


def x_addrs(c, vsrc, vrd, t0, t1, tokbase=None):
    c(f"""
    s_and_b32 s{sT0}, s{sW}, 1
    s_lshl_b32 s{sT0}, s{sT0}, 2
    v_lshrrev_b32 v{t0}, 4, v0
    v_add_u32 v{t0}, s{sT0}, v{t0}
    v_and_b32 v{t1}, 7, v0
    v_xor_b32 v{t0}, v{t0}, v{t1}
    v_lshlrev_b32 v{t0}, 4, v{t0}
    v_lshrrev_b32 v{t1}, 3, v0
    v_mul_u32_u24 v{t1}, 896, v{t1}
    v_add_u32 v{vsrc}, v{t0}, v{t1}
    v_bfe_u32 v{t0}, v0, 1, 3
    v_lshrrev_b32 v{t1}, 5, v0
    v_xor_b32 v{t0}, v{t0}, v{t1}
    v_lshlrev_b32 v{t0}, 4, v{t0}
    v_and_b32 v{t1}, 31, v0
    v_lshl_add_u32 v{vrd}, v{t1}, 7, v{t0}
    """)
    if tokbase is not None:
        c(f"v_add_u32 v{vrd}, s{tokbase}, v{vrd}")
    for k in range(1, 4):
        c(f"v_xor_b32 v{vrd+k}, {32*k}, v{vrd}")


def main_loop(c, reads, mfmas, dmas, rebase, tail):
    stamp(c, 1)
    c("WAIT st0 lg*\ns_barrier")
    stamp(c, 2)
    c.add(reads(0))
    pend = []
    for g in range(28):
        nxt = g + 1
        if nxt % 4 == 0:
            s = nxt // 4
            if nxt < 28 or tail is not None:
                c(f"WAIT st{s} lg*\ns_barrier")
                c.add(rebase(s))
                pend = dmas(s + 2)
        rd = reads(nxt) if nxt < 28 else (tail or [])
        m = mfmas(g)
        per = -(-len(rd) // 3)
        take = -(-len(pend) // (4 - nxt % 4)) if pend else 0
        mine, pend = pend[:take], pend[take:]
        for k in range(4):
            c.append(m[k])
            if k < 3:
                c.add(rd[k * per:(k + 1) * per])
            if k >= 2 and mine:
                h = (len(mine) + 1) // 2 if k == 2 else len(mine)
                for grp in mine[:h]:
                    c.add(grp)
                mine = mine[h:]


def silu_epilogue(a, t):
    g = []
    for i in range(8):
        g.append([I(f"v_mul_f32 v{a+8+i}, v{a+i}, v{a+8+i}"), I(f"v_mul_f32 v{a+i}, -s{sL2E}, v{a+i}".replace("v_mul_f32", "v_mul_f32_e64"))])
    for i in range(8):
        g.append([I(f"v_exp_f32 v{a+i}, v{a+i}")])
    for i in range(8):
        g.append([I(f"v_add_f32 v{a+i}, 1.0, v{a+i}")])
    for i in range(8):
        g.append([I(f"v_rcp_f32 v{a+i}, v{a+i}")])
    for i in range(8):
        g.append([I(f"v_mul_f32 v{a+8+i}, v{a+8+i}, v{a+i}")])
    for j in range(4):
        g.append([I(f"v_cvt_pk_bf16_f32 v{a+j}, v{a+8+2*j}, v{a+9+2*j}")])
    g.append([I(f"s_add_u32 s{sSo}, s{sHoff}, {t*112*1024}"),
              I(f"buffer_store_dwordx4 {vr(a)}, v1, {srd(rWS)}, s{sSo} offen sc1", f"hst{t}")])
    return g


def hflag(ts):
    g = S()
    g(f"WAIT hst{ts[-1]}")
    for t in ts:
        g(f"s_add_u32 s{sSo}, s{sFin}, {t*1792}\nbuffer_store_dword v{vOne}, v{vFin}, {srd(rWS)}, s{sSo} offen sc1")
    return g


def role_ffn(done):
    c = S()
    vW1, vW3, vXs, vWr, vXr = 2, 3, 4, 5, 6
    XF, ACC, ACC4, WF = 32, 64, 128, 144
    c(f"""
    s_mul_i32 s{sT0}, s{sXCD}, 20
    s_add_u32 s{sT0}, s{sT0}, s{sSLOT}
    s_cmp_ge_u32 s{sT0}, 154
    s_cbranch_scc1 L_janitor
    """)
    sdiv(c, sGRP, sRNG, sT0, 6, 160)
    c(f"s_sub_u32 s{sT1}, s{sT0}, 84\ns_max_i32 s{sT1}, s{sT1}, 0")
    sdiv(c, sT2, sT3, sT1, 5, 80)
    c(f"""
    s_add_u32 s{sT3}, s{sT3}, 6
    s_cmp_ge_u32 s{sT0}, 84
    s_cselect_b32 s{sGRP}, s{sT2}, s{sGRP}
    s_cselect_b32 s{sRNG}, s{sT3}, s{sRNG}
    """)
    mk_srd(c, rA, pW1, 448 * 3584)
    mk_srd(c, rB, pW3, 448 * 3584)
    c(f"""
    s_mul_i32 s{sWoff}, s{sW}, {4*3584}
    s_lshl_b32 s{sT0}, s{sGRP}, 8
    s_add_u32 s{sWoff}, s{sWoff}, s{sT0}
    s_mul_i32 s{sXoff}, s{sRNG}, {192*896}
    s_mul_i32 s{sT0}, s{sW}, {8*896}
    s_add_u32 s{sXoff}, s{sXoff}, s{sT0}
    s_mul_i32 s{sHoff}, s{sRNG}, {6*112}
    s_lshl_b32 s{sT0}, s{sGRP}, 3
    s_add_u32 s{sHoff}, s{sHoff}, s{sT0}
    s_add_u32 s{sHoff}, s{sHoff}, s{sW}
    s_lshl_b32 s{sFin}, s{sHoff}, 4
    s_add_u32 s{sFin}, s{sFin}, {hex(HF_OFF)}
    s_lshl_b32 s{sHoff}, s{sHoff}, 10
    v_lshlrev_b32 v1, 4, v0
    v_lshrrev_b32 v10, 4, v0
    v_lshlrev_b32 v11, 6, v10
    v_and_b32 v12, 0xf0, v1
    v_xor_b32 v11, v11, v12
    v_mul_u32_u24 v10, 3584, v10
    v_add_u32 v{vW1}, v10, v11
    v_xor_b32 v{vW3}, 32, v{vW1}
    """)
    x_addrs(c, vXs, vXr, 10, 11)

    def dmas(s):
        g = []
        if s < 7:
            for j in (0, 8):
                g.append(dma(vW1, rA, sWoff, (64 * s + 4 * j) * 3584, SL[s % 3] + j * 1024, f"st{s}"))
                g.append(dma(vW3, rB, sWoff, (64 * s + 4 * j) * 3584, SL[s % 3] + 16384 + j * 1024, f"st{s}"))
                g.append(dma(vXs, rX, sXoff, 8 * j * 896 + 128 * s, SL[s % 3] + 32768 + j * 1024, f"st{s}"))
        elif s == 7:
            for k in range(7):
                g.append(dma(vXs, rX, sXoff, 128 * 896 + 128 * k, XB + k * 8192, "st7"))
        return g

    for s in range(3):
        for g in dmas(s):
            c.add(g)
    c(f"""
    v_bfe_u32 v10, v0, 2, 2
    v_bfe_u32 v11, v0, 4, 1
    v_lshlrev_b32 v12, 6, v10
    v_lshl_add_u32 v12, v11, 5, v12
    v_and_b32 v13, 3, v0
    v_lshlrev_b32 v13, 3, v13
    s_lshl_b32 s{sT0}, s{sW}, 5
    v_add_u32 v13, s{sT0}, v13
    v_xor_b32 v12, v12, v13
    v_lshrrev_b32 v13, 5, v0
    v_lshl_add_u32 v13, v13, 3, v10
    v_lshl_add_u32 v12, v13, 8, v12
    v_lshl_add_u32 v{vWr}, v11, 14, v12
    """)

    def reads(g):
        ks, r = g % 4, S()
        for rd in range(2):
            r(f"ds_read_b64_tr_b16 {vr(WF+4*g+2*rd,2)}, v{vWr} offset:{(16*ks+4*rd)*256}")
        for t in range(4):
            r(f"ds_read_b128 {vr(XF+16*(g&1)+4*t)}, v{vXr+ks} offset:{32768+4096*t}")
        return r

    def mfmas(g):
        return [mfma(ACC + 16 * t, WF + 4 * g, XF + 16 * (g & 1) + 4 * t, g == 0) for t in range(4)]

    def rebase(s):
        new = XB if s == 7 else SL[s % 3]
        d = (new - SL[(s - 1) % 3]) & 0xFFFFFFFF
        r = S()
        for v in ([vWr] if s < 7 else []) + [vXr + k for k in range(4)]:
            r(f"v_add_u32 v{v}, {hex(d)}, v{v}")
        if s == 5:
            ready_issue(r, vRF, vRA)
        return r

    def read2(n):
        t, k = n // 28, n % 28
        return I(f"ds_read_b128 {vr(XF+4*(n%8))}, v{vXr+k%4} offset:{(k//4)*8192+t*4096}")

    main_loop(c, reads, mfmas, dmas, rebase, [read2(n) for n in range(4)])
    ready_check(c, vRF, vRA)
    stamp(c, 3)
    c(f"s_cmp_eq_u32 s{sRNG}, 10\ns_cbranch_scc1 L_ffn_short")
    p2 = S()
    for n in range(56):
        t, k = n // 28, n % 28
        p2.append(mfma(ACC4 if t == 0 else ACC, WF + 4 * k, XF + 4 * (n % 8), k == 0))
        if n + 4 < 56:
            p2.append(read2(n + 4))
    e = []
    for t in range(4):
        ep = silu_epilogue(ACC + 16 * t, t)
        if t == 3:
            ep.insert(24, hflag([0, 1]))
        e += ep
    p2 = weave(p2, e, 2, 45)
    p2 = weave(p2, silu_epilogue(ACC4, 4), 45, 56)
    c.add(p2)
    stamp(c, 4)
    c.add(hflag([2, 3]))
    ep = silu_epilogue(ACC, 5)
    for g in ep:
        c.add(g)
    c.add(hflag([4]))
    c(f"s_add_u32 s{sFin}, s{sFin}, {5*1792}")
    c(f"s_branch {done}\nL_ffn_short:\ns_waitcnt vmcnt(0) lgkmcnt(0)\ns_nop 7\ns_nop 7")
    for t in range(4):
        for g in silu_epilogue(ACC + 16 * t, t):
            c.add(g)
    c.add(hflag([0, 1, 2]))
    c(f"s_add_u32 s{sFin}, s{sFin}, {3*1792}")
    c(f"s_branch {done}")
    return c


def janitor(done):
    c = S()
    c(f"""
    s_sub_u32 s{sT0}, s{sT0}, 154
    s_lshl_b32 s{sT1}, s{sT0}, 3
    s_add_u32 s{sT1}, s{sT1}, s{sW}
    s_lshl_b32 s{sT1}, s{sT1}, 12
    s_add_u32 s{sT1}, s{sT1}, {hex(HF_OFF)}
    v_lshlrev_b32 v1, 4, v0
    v_mov_b32 v4, 0
    v_mov_b32 v5, 0
    v_mov_b32 v6, 0
    v_mov_b32 v7, 0
    """)
    for j in range(4):
        c(f"buffer_store_dwordx4 v[4:7], v1, {srd(rWS)}, s{sT1} offen offset:{1024*j} sc1")
    c(f"""
    s_lshl_b32 s{sT0}, s{sT0}, 2
    s_lshl_b32 s{sT1}, s{sW}, 12
    s_add_u32 s{sT0}, s{sT0}, s{sT1}
    s_waitcnt vmcnt(0)
    s_barrier
    buffer_store_dword v{vOne}, v{vFin}, {srd(rD)}, s{sT0} offen sc1
    s_mov_b32 s{sFin}, {hex(OOB)}
    """)
    ready_issue(c, vRF, vRA)
    ready_check(c, vRF, vRA)
    c(f"s_branch {done}")
    return c


def phi_loads(c, tmp, va, vb, shead):
    for ks in range(2):
        for i in range(8):
            v = vb if (ks == 1 and i >= 4) else va
            c(f"buffer_load_ushort v{tmp+8*ks+i}, v{v}, {srd(rB)}, s{shead} offen offset:{(16*ks+8*(i>>2)+(i&3))*56}")


def phi_pack(c, dst, tmp):
    for j in range(8):
        c(f"v_lshl_or_b32 v{dst+j}, v{tmp+2*j+1}, 16, v{tmp+2*j}")


def phi_addrs(c, va, vb, t0, t1):
    c(f"""
    v_and_b32 v{t0}, 31, v0
    v_subrev_u32 v{t1}, 2, v{t0}
    v_cmp_gt_u32 vcc, 28, v{t0}
    v_cndmask_b32 v{t1}, v{t1}, v{t0}, vcc
    v_lshlrev_b32 v{t1}, 1, v{t1}
    v_lshrrev_b32 v{va}, 5, v0
    v_mul_u32_u24 v{va}, 224, v{va}
    v_add_u32 v{va}, v{va}, v{t1}
    v_and_b32 v{t0}, 26, v{t0}
    v_mov_b32 v{t1}, {hex(OOB)}
    v_cmp_eq_u32 vcc, 26, v{t0}
    v_cndmask_b32 v{va}, v{va}, v{t1}, vcc
    v_cmp_lt_u32 vcc, 31, v0
    v_cndmask_b32 v{vb}, v{va}, v{t1}, vcc
    """)


def feature_exps(c, acc, pk, phi, P, EP, EM, t):
    for j in range(8):
        c(f"v_cvt_pk_bf16_f32 v{pk+j}, v{acc+2*j}, v{acc+2*j+1}")
    c.append(mfma(P, phi, pk, True))
    c.append(mfma(P, phi + 4, pk + 4))
    c(f"v_max3_f32 v{t}, v{P}, v{P+1}, v{P+2}\nv_max3_f32 v{t+1}, -v{P}, -v{P+1}, -v{P+2}")
    for j in range(3, 13, 2):
        c(f"v_max3_f32 v{t}, v{t}, v{P+j}, v{P+j+1}\nv_max3_f32 v{t+1}, v{t+1}, -v{P+j}, -v{P+j+1}")
    c(f"""
    v_max_f32 v{t}, v{t}, v{P+13}
    v_max_f32_e64 v{t+1}, v{t+1}, -v{P+13}
    v_permlane32_swap_b32 v{t}, v{t+1}
    v_max_f32 v{t}, v{t}, v{t+1}
    v_mul_f32_e64 v{t}, -s{sL2E}, v{t}
    v_mov_b32 v{t+1}, v{t}
    v_permlane32_swap_b32 v{t}, v{t+1}
    """)
    for j in range(14):
        c(f"v_fma_f32 v{EP+j}, v{P+j}, s{sL2E}, v{t}\nv_fma_f32 v{EM+j}, -v{P+j}, s{sL2E}, v{t+1}")
    for j in range(14):
        c(f"v_exp_f32 v{EP+j}, v{EP+j}\nv_exp_f32 v{EM+j}, v{EM+j}")


def role_attn(isq, done):
    c = S()
    vWs, vXs, vWa, vWb, vXr = 2, 3, 4, 5, 6
    vPa, vPb, vGw = 10, 11, 12
    GW = 16
    WB, XF, ACC = 32, 48, 64
    PHI = 128
    sSEL, sTG, sHD = sTE, sTL, sCB
    c(f"""
    s_lshr_b32 s{sSEL}, s{sW}, 2
    s_and_b32 s{sTG}, s{sW}, 3
    s_lshr_b32 s{sRNG}, s{sXCD}, 2
    s_lshl_b32 s{sRNG}, s{sRNG}, 2
    s_and_b32 s{sT0}, s{sSLOT}, 3
    s_add_u32 s{sRNG}, s{sRNG}, s{sT0}
    s_and_b32 s{sGRP}, s{sXCD}, 3
    """)
    if not isq:
        c(f"""
        s_lshl_b32 s{sGRP}, s{sGRP}, 1
        s_sub_u32 s{sT0}, s{sSLOT}, 20
        s_lshr_b32 s{sT0}, s{sT0}, 2
        s_add_u32 s{sGRP}, s{sGRP}, s{sT0}
        s_lshl_b32 s{sHD}, s{sGRP}, 1
        s_add_u32 s{sHD}, s{sHD}, s{sSEL}
        """)
    else:
        c(f"""
        s_lshl_b32 s{sHD}, s{sGRP}, 1
        s_add_u32 s{sHD}, s{sHD}, s{sSEL}
        s_lshl_b32 s{sHD}, s{sHD}, 1
        s_mov_b32 s{sM0}, 0xf3ff3fff
        s_mov_b32 s{sM0+1}, 0xfff3ff3f
        """)
        mk_srd(c, rG, pGATE, 896)
    mk_srd(c, rA, pQKV, 448 * 2688)
    mk_srd(c, rB, pPHI, 16 * 1568)
    c(f"""
    s_mul_i32 s{sWoff}, s{sW}, {4*2688}
    s_mul_i32 s{sT0}, s{sGRP}, {224 if isq else 112}
    s_add_u32 s{sWoff}, s{sWoff}, s{sT0}
    s_mul_i32 s{sXoff}, s{sRNG}, {256*896}
    s_mul_i32 s{sT0}, s{sW}, {8*896}
    s_add_u32 s{sXoff}, s{sXoff}, s{sT0}
    v_lshlrev_b32 v1, 4, v0
    v_lshrrev_b32 v13, 4, v0
    v_lshlrev_b32 v14, 2, v13
    v_and_b32 v15, 15, v0
    v_xor_b32 v14, v14, v15
    v_mul_u32_u24 v13, 2688, v13
    """)
    if isq:
        c(f"v_lshl_add_u32 v{vWs}, v14, 4, v13")
    else:
        c(f"""
        v_lshrrev_b32 v15, 3, v14
        v_mul_u32_u24 v15, 896, v15
        v_and_b32 v14, 7, v14
        v_min_u32 v14, 6, v14
        v_lshl_add_u32 v14, v14, 4, v15
        v_add_u32 v14, 0x380, v14
        v_add_u32 v{vWs}, v14, v13
        """)
    c(f"s_lshl_b32 s{sT1}, s{sTG}, 13")
    x_addrs(c, vXs, vXr, 13, 14, tokbase=sT1)
    if isq:
        c(f"""
        s_lshl_b32 s{sT0}, s{sW}, 3
        v_lshrrev_b32 v13, 3, v0
        v_add_u32 v13, s{sT0}, v13
        v_and_b32 v14, 1, v0
        v_lshlrev_b32 v14, 26, v14
        v_lshl_add_u32 v14, v13, 1, v14
        """)
        for s in range(7):
            c(f"buffer_load_ushort v{GW+s}, v14, {srd(rG)}, 0 offen offset:{128*s}")
        c(f"""
        v_and_b32 v15, 3, v13
        v_lshlrev_b32 v15, 6, v15
        v_and_b32 v{vGw}, 7, v0
        v_lshlrev_b32 v{vGw}, 2, v{vGw}
        v_add_u32 v{vGw}, 0xe0, v{vGw}
        v_xor_b32 v{vGw}, v{vGw}, v15
        v_lshl_add_u32 v{vGw}, v13, 8, v{vGw}
        """)

    def patch(s):
        if SL[s % 3] < 65536:
            return [I(f"ds_write_b32 v{vGw}, v{GW+s} offset:{SL[s%3]}")]
        return [I(f"v_add_u32 v13, {hex(SL[s%3])}, v{vGw}"), I(f"ds_write_b32 v13, v{GW+s}")]

    def dmas(s, with_patch=True):
        g = []
        if s < 7:
            for j in (0, 8):
                g.append(dma(vWs, rA, sWoff, (64 * s + 4 * j) * 2688, SL[s % 3] + j * 1024, f"st{s}", sM0 if isq else None))
                for m in (0, 16):
                    g.append(dma(vXs, rX, sXoff, 8 * (j + m) * 896 + 128 * s, SL[s % 3] + 16384 + (j + m) * 1024, f"st{s}"))
            if isq and with_patch:
                g.append(patch(s))
        return g

    for g in dmas(0, False):
        c.add(g)
    phi_addrs(c, vPa, vPb, 13, 14)
    TMP = 160
    c(f"s_mul_i32 s{sT0}, s{sHD}, 1568\ns_add_u32 s{sT1}, s{sT0}, 1568")
    for s in (1, 2):
        for g in dmas(s, False):
            c.add(g)
    phi_loads(c, TMP, vPa, vPb, sT0)
    if isq:
        phi_loads(c, TMP + 16, vPa, vPb, sT1)
        for s in range(3):
            c.add(patch(s))
    c(f"""
    v_bfe_u32 v13, v0, 2, 2
    v_bfe_u32 v14, v0, 4, 1
    v_and_b32 v15, 3, v0
    v_lshl_add_u32 v14, v14, 2, v15
    v_lshlrev_b32 v15, 3, v14
    v_lshrrev_b32 v23, 5, v0
    v_lshl_add_u32 v23, v23, 3, v13
    v_lshlrev_b32 v23, 8, v23
    v_lshlrev_b32 v13, 6, v13
    s_mul_i32 s{sT0}, s{sSEL}, {112 if isq else 56}
    v_add_u32 v{vWa}, s{sT0}, v15
    """)
    if isq:
        c(f"""
        v_add_u32 v{vWb}, 56, v{vWa}
        s_lshl_b32 s{sT0}, s{sSEL}, 4
        s_sub_u32 s{sT0}, 248, s{sT0}
        s_sub_u32 s{sT1}, s{sT0}, 8
        v_cmp_eq_u32 vcc, 7, v14
        v_mov_b32 v15, s{sT0}
        v_cndmask_b32 v{vWa}, v{vWa}, v15, vcc
        v_mov_b32 v15, s{sT1}
        v_cndmask_b32 v{vWb}, v{vWb}, v15, vcc
        """)
    else:
        c(f"v_add_u32 v{vWb}, 0x80, v{vWa}")
    c(f"""
    v_xor_b32 v{vWa}, v{vWa}, v13
    v_xor_b32 v{vWb}, v{vWb}, v13
    v_add_u32 v{vWa}, v{vWa}, v23
    v_add_u32 v{vWb}, v{vWb}, v23
    """)

    def reads(g):
        ks, r, b = g % 4, S(), 8 * (g & 1)
        for rd in range(2):
            r(f"ds_read_b64_tr_b16 {vr(WB+b+2*rd,2)}, v{vWa} offset:{(16*ks+4*rd)*256}")
        for t in range(2):
            r(f"ds_read_b128 {vr(XF+b+4*t)}, v{vXr+ks} offset:{16384+4096*t}")
        for rd in range(2):
            r(f"ds_read_b64_tr_b16 {vr(WB+b+4+2*rd,2)}, v{vWb} offset:{(16*ks+4*rd)*256}")
        return r

    def mfmas(g):
        b = 8 * (g & 1)
        m = [mfma(ACC + 16 * t, WB + b, XF + b + 4 * t, g == 0) for t in range(2)]
        if isq:
            m += [mfma(ACC + 32 + 16 * t, WB + b + 4, XF + b + 4 * t, g == 0) for t in range(2)]
        else:
            m += [mfma(ACC + 32 + 16 * t, XF + b + 4 * t, WB + b + 4, g == 0) for t in range(2)]
        return m

    def rebase(s):
        d = (SL[s % 3] - SL[(s - 1) % 3]) & 0xFFFFFFFF
        r = S()
        for v in [vWa, vWb] + [vXr + k for k in range(4)]:
            r(f"v_add_u32 v{v}, {hex(d)}, v{v}")
        if s == 4:
            ready_issue(r, vRF, vRA)
        if s == 3:
            phi_pack(r, PHI, TMP)
            if isq:
                phi_pack(r, PHI + 8, TMP + 16)
        return r

    main_loop(c, reads, mfmas, dmas, rebase, None)
    ready_check(c, vRF, vRA)
    stamp(c, 3)
    if isq:
        q_tail(c, ACC, PHI, sSEL, sTG, sHD)
    else:
        kv_tail(c, ACC, PHI, sSEL, sTG, sHD)
    c(f"s_branch {done}")
    return c


def kv_tail(c, ACC, PHI, sSEL, sTG, sHD):
    KVA, P, EP, EM, PK, T = 136, 168, 184, 200, 216, 224
    AF = 232
    vWr, vRd, vONE = 2, 6, 8
    c(f"""
    s_lshl_b32 s{sT0}, s{sW}, 13
    s_add_u32 s{sT0}, s{sT0}, 49152
    v_bfe_u32 v13, v0, 1, 3
    v_lshrrev_b32 v14, 5, v0
    v_xor_b32 v13, v13, v14
    v_lshlrev_b32 v13, 3, v13
    v_and_b32 v15, 31, v0
    v_lshl_add_u32 v13, v15, 6, v13
    v_add_u32 v{vWr}, s{sT0}, v13
    v_xor_b32 v{vWr+1}, 16, v{vWr}
    v_xor_b32 v{vWr+2}, 32, v{vWr}
    v_xor_b32 v{vWr+3}, 48, v{vWr}
    v_cmp_lt_u32 s[{sM1}:{sM1+1}], 27, v15
    v_mov_b32 v{vONE}, 0x3f803f80
    v_bfe_u32 v13, v0, 2, 2
    v_lshl_add_u32 v13, v14, 2, v13
    v_lshrrev_b32 v14, 1, v13
    v_bfe_u32 v15, v0, 4, 1
    v_and_b32 v16, 3, v0
    v_lshl_add_u32 v15, v15, 2, v16
    v_xor_b32 v14, v14, v15
    v_lshlrev_b32 v14, 3, v14
    v_lshl_add_u32 v13, v13, 6, v14
    v_add_u32 v{vRd}, s{sT0}, v13
    v_xor_b32 v{vRd+1}, 32, v{vRd}
    """)
    for t in range(2):
        feature_exps(c, ACC + 16 * t, PK, PHI, P, EP, EM, T)
        c(f"v_add_f32 v{T}, v{EP}, v{EP+1}\nv_add_f32 v{T+1}, v{EM}, v{EM+1}")
        for j in range(2, 14):
            c(f"v_add_f32 v{T}, v{T}, v{EP+j}\nv_add_f32 v{T+1}, v{T+1}, v{EM+j}")
        c(f"""
        v_permlane32_swap_b32 v{T}, v{T+1}
        v_add_f32 v{T}, v{T}, v{T+1}
        v_rcp_f32 v{T}, v{T}
        v_mov_b32 v{T+1}, v{T}
        v_permlane32_swap_b32 v{T}, v{T+1}
        """)
        for sg, E in enumerate((EP, EM)):
            for j in range(14):
                c(f"v_mul_f32 v{E+j}, v{E+j}, v{T+sg}")
            for j in range(7):
                c(f"v_cvt_pk_bf16_f32 v{E+j}, v{E+2*j}, v{E+2*j+1}")
            c(f"v_mov_b32 v{E+7}, 0")
            for q in range(4):
                c(f"ds_write_b64 v{vWr+q}, {vr(E+2*q,2)} offset:{4096*t+2048*sg}", "phw")
        A = ACC + 32 + 16 * t
        for j in range(8):
            c(f"v_cvt_pk_bf16_f32 v{A+j}, v{A+2*j}, v{A+2*j+1}")
        for j in range(8):
            c(f"v_cndmask_b32 v{A+j}, v{A+j}, v{vONE}, s[{sM1}:{sM1+1}]")
        for sg in range(2):
            for ks in range(2):
                for rd in range(2):
                    c(f"ds_read_b64_tr_b16 {vr(AF+8*sg+4*ks+2*rd,2)}, v{vRd+rd} offset:{4096*t+2048*sg+(16*ks+8*rd)*64}")
        for sg in range(2):
            for ks in range(2):
                c.append(mfma(KVA + 16 * sg, AF + 8 * sg + 4 * ks, A + 4 * ks, t == 0 and ks == 0))
    c(f"""
    v_add_u32 v13, s{sT0}, v1
    s_lshl_b32 s{sT1}, s{sSEL}, 15
    s_lshl_b32 s{sT2}, s{sTG}, 11
    s_add_u32 s{sT1}, s{sT1}, s{sT2}
    s_add_u32 s{sT1}, s{sT1}, 49152
    v_add_u32 v14, s{sT1}, v1
    """)
    for j in range(8):
        c(f"ds_write_b128 v13, {vr(KVA+4*j)} offset:{1024*j}")
    c("WAIT lg*\ns_barrier")
    for src in range(4):
        for e in range(2):
            c(f"ds_read_b128 {vr(64+8*src+4*e)}, v14 offset:{8192*src+1024*e}")
    for src in range(1, 4):
        for j in range(8):
            c(f"v_add_f32 v{64+j}, v{64+j}, v{64+8*src+j}")
    for j in range(4):
        c(f"v_cvt_pk_bf16_f32 v{64+j}, v{64+2*j}, v{64+2*j+1}")
    c(f"""
    s_lshl_b32 s{sT0}, s{sHD}, 2
    s_add_u32 s{sT0}, s{sT0}, s{sTG}
    s_lshl_b32 s{sT0}, s{sT0}, 3
    s_add_u32 s{sT0}, s{sT0}, s{sRNG}
    s_lshl_b32 s{sT0}, s{sT0}, 10
    s_add_u32 s{sT0}, s{sT0}, {hex(KVP_OFF)}
    buffer_store_dwordx4 v[64:67], v1, {srd(rWS)}, s{sT0} offen sc1
    s_lshl_b32 s{sFin}, s{sGRP}, 3
    s_add_u32 s{sFin}, s{sFin}, s{sRNG}
    s_lshl_b32 s{sFin}, s{sFin}, 3
    s_add_u32 s{sFin}, s{sFin}, s{sW}
    s_lshl_b32 s{sFin}, s{sFin}, 4
    s_add_u32 s{sFin}, s{sFin}, {hex(KF_OFF)}
    v_cmp_eq_u32 vcc, 1, v0
    v_mov_b32 v13, 0x2000
    v_cndmask_b32 v{vFin}, v{vFin}, v13, vcc
    """)
    stamp(c, 4)


def q_tail(c, ACC, PHI, sSEL, sTG, sHD):
    EF = 192
    P, EP, EM, PK, T = 144, 160, 176, 32, 40
    G = 2
    for t in range(2):
        c(f"""
        v_mul_f32_e64 v{G+t}, -s{sL2E}, v{ACC+16*t+12}
        v_exp_f32 v{G+t}, v{G+t}
        v_add_f32 v{G+t}, 1.0, v{G+t}
        v_rcp_f32 v{G+t}, v{G+t}
        """)
    for u in range(4):
        feature_exps(c, ACC + 16 * u, PK, PHI + 8 * (u >> 1), P, EP, EM, T)
        for sg, E in enumerate((EP, EM)):
            for j in range(7):
                c(f"v_cvt_pk_bf16_f32 v{EF+16*u+8*sg+j}, v{E+2*j}, v{E+2*j+1}")
            c(f"v_mov_b32 v{EF+16*u+8*sg+7}, 0")
    c(f"""
    s_lshl_b32 s{sT0}, s{sGRP}, 3
    s_add_u32 s{sT0}, s{sT0}, s{sW}
    s_lshl_b32 s{sT0}, s{sT0}, 14
    s_add_u32 s{sT0}, s{sT0}, {hex(KVP_OFF)}
    """)
    stamp(c, 4)
    c(f"""
    s_lshr_b32 s{sT1}, s{sRNG}, 2
    s_lshl_b32 s{sT1}, s{sT1}, 3
    s_lshl_b32 s{sT2}, s{sGRP}, 1
    s_add_u32 s{sT1}, s{sT1}, s{sT2}
    s_add_u32 s{sT1}, s{sT1}, s{sSEL}
    s_lshl_b32 s{sT1}, s{sT1}, 10
    s_lshl_b32 s{sT2}, s{sTG}, 5
    s_add_u32 s{sT1}, s{sT1}, s{sT2}
    s_add_u32 s{sT1}, s{sT1}, {hex(KF_OFF)}
    v_and_b32 v{vRA}, 7, v0
    v_lshlrev_b32 v{vRA}, 7, v{vRA}
    v_bfe_u32 v13, v0, 3, 1
    v_lshl_add_u32 v{vRA}, v13, 4, v{vRA}
    """)
    poll_issue(c, vRF, vRA, rWS, f"s{sT1}")
    poll_check(c, vRF, vRA, rWS, f"s{sT1}")
    stamp(c, 5)
    LD = 64
    for n in range(16):
        if n and n % 4 == 0:
            c(f"s_add_u32 s{sT0}, s{sT0}, 4096")
        c(f"buffer_load_dwordx4 {vr(LD+4*n)}, v1, {srd(rWS)}, s{sT0} offen offset:{1024*(n%4)} sc1")
    c(f"""
    v_and_b32 v13, 31, v0
    v_cmp_eq_u32 s[{sM1}:{sM1+1}], 29, v13
    v_mov_b32 v8, 0x3f803f80
    s_lshl_b32 s{sT1}, s{sW}, 11
    s_add_u32 s{sT1}, s{sT1}, 49152
    v_add_u32 v14, s{sT1}, v1
    s_lshl_b32 s{sT1}, s{sSEL}, 13
    s_add_u32 s{sT1}, s{sT1}, 49152
    v_add_u32 v15, s{sT1}, v1
    """)
    SUM = 144
    for fr in range(2):
        for p in range(8):
            src = LD + 4 * (8 * fr + p)
            for j in range(4):
                lo, hi = SUM + 8 * fr + 2 * j, SUM + 8 * fr + 2 * j + 1
                if p == 0:
                    c(f"v_lshlrev_b32 v{lo}, 16, v{src+j}\nv_and_b32 v{hi}, 0xffff0000, v{src+j}")
                else:
                    c(f"""
                    v_lshlrev_b32 v{T}, 16, v{src+j}
                    v_and_b32 v{T+1}, 0xffff0000, v{src+j}
                    v_add_f32 v{lo}, v{lo}, v{T}
                    v_add_f32 v{hi}, v{hi}, v{T+1}
                    """)
        for j in range(4):
            d = SUM + 8 * fr
            c(f"v_cvt_pk_bf16_f32 v{d+j}, v{d+2*j}, v{d+2*j+1}")
        for j in range(4):
            d = SUM + 8 * fr
            c(f"v_cndmask_b32 v{d+j}, v{d+j}, v8, s[{sM1}:{sM1+1}]")
        c(f"ds_write_b128 v14, {vr(SUM+8*fr)} offset:{1024*fr}")
    c("WAIT lg*\ns_barrier")
    stamp(c, 6)
    KF = 32
    for n in range(8):
        c(f"ds_read_b128 {vr(KF+4*n)}, v15 offset:{1024*n}")
    c(f"""
    s_lshl_b32 s{sT0}, s{sRNG}, 2
    s_add_u32 s{sT0}, s{sT0}, s{sTG}
    s_lshl_b32 s{sT1}, s{sT0}, 16
    s_lshl_b32 s{sT2}, s{sHD}, 11
    s_add_u32 s{sT1}, s{sT1}, s{sT2}
    s_add_u32 s{sT1}, s{sT1}, {hex(O_OFF)}
    s_add_u32 s{sT2}, s{sT1}, 32768
    s_lshl_b32 s{sT0}, s{sT0}, 11
    s_lshl_b32 s{sT3}, s{sHD}, 6
    s_add_u32 s{sT0}, s{sT0}, s{sT3}
    s_add_u32 s{sT0}, s{sT0}, {hex(GC_OFF)}
    v_cmp_lt_u32 s[{sM1}:{sM1+1}], 31, v0
    v_lshlrev_b32 v13, 2, v13
    v_mov_b32 v14, {hex(OOB)}
    v_cndmask_b32 v13, v14, v13, s[{sM1}:{sM1+1}]
    v_mov_b32 v9, 0x358637bd
    v_mov_b32 v8, 0
    """)
    for t in range(2):
        c(f"v_sub_f32 v{4+t}, 1.0, v{G+t}\nbuffer_store_dword v{4+t}, v13, {srd(rWS)}, s{sT0} offen offset:{1024*t} sc1")
    for u in range(4):
        hd, t = u >> 1, u & 1
        N = 64 + 32 * u
        for sg in range(2):
            for ks in range(2):
                c.append(mfma(N + 16 * sg, KF + 16 * hd + 8 * sg + 4 * ks, EF + 16 * u + 8 * sg + 4 * ks, ks == 0))
    for u in range(4):
        hd, t = u >> 1, u & 1
        N = 64 + 32 * u
        c(f"""
        v_rcp_f32 v16, v{N+13}
        v_rcp_f32 v17, v{N+29}
        v_fma_f32 v18, v{N+12}, v16, v9
        v_fma_f32 v18, v{N+28}, v17, v18
        v_rcp_f32 v18, v18
        v_mul_f32 v18, v18, v{G+t}
        v_mul_f32 v16, v16, v18
        v_mul_f32 v17, v17, v18
        v_permlane32_swap_b32 v16, v17
        v_mov_b32 v16, v17
        v_permlane32_swap_b32 v16, v17
        """)
        for j in range(16):
            c(f"v_mul_f32 v{N+j}, v{N+j}, v16")
        for j in range(16):
            c(f"v_fmac_f32 v{N+j}, v{N+16+j}, v17")
        for j in range(8):
            c(f"v_cvt_pk_bf16_f32 v{N+j}, v{N+2*j}, v{N+2*j+1}")
        for j in (6, 7):
            c(f"v_cndmask_b32 v{N+j}, v{N+j}, v8, s[{sM1}:{sM1+1}]")
        for ks in range(2):
            c(f"buffer_store_dwordx4 {vr(N+4*ks)}, v1, {srd(rWS)}, s{sT1+t} offen offset:{2048*hd+1024*ks} sc1")
    stamp(c, 7)
    c(f"""
    s_lshl_b32 s{sFin}, s{sRNG}, 2
    s_add_u32 s{sFin}, s{sFin}, s{sTG}
    s_lshl_b32 s{sFin}, s{sFin}, 3
    s_add_u32 s{sFin}, s{sFin}, s{sGRP}
    s_lshl_b32 s{sFin}, s{sFin}, 3
    s_add_u32 s{sFin}, s{sFin}, s{sSEL}
    s_lshl_b32 s{sFin}, s{sFin}, 4
    s_add_u32 s{sFin}, s{sFin}, {hex(OF_OFF)}
    v_cmp_eq_u32 vcc, 1, v0
    v_mov_b32 v13, 0x200
    v_cndmask_b32 v{vFin}, v{vFin}, v13, vcc
    s_waitcnt vmcnt(0)
    buffer_store_dword v{vOne}, v{vFin}, {srd(rWS)}, s{sFin} offen sc1
    """)
    stamp(c, 8)


def phase2(done):
    c = S()
    WF, ACC, HR, NR, PD = 112, 48, 8, 9, 6
    vSrc, vRd, vG = 2, 3, 6
    sdiv(c, sT0, sCB, sSLOT, 7, 32)
    c(f"s_lshl_b32 s{sT1}, s{sXCD}, 2\ns_add_u32 s{sT0}, s{sT0}, s{sT1}")
    sdiv(c, sT1, sT2, sT0, 3, 32)
    c(f"""
    s_mul_i32 s{sTE}, s{sT1}, 6
    s_add_u32 s{sTE}, s{sTE}, s{sT2}
    s_cmp_eq_u32 s{sT2}, 2
    s_cselect_b32 s{sT3}, 1, 4
    s_cmp_ge_u32 s{sT0}, 30
    s_cselect_b32 s{sT3}, 1, s{sT3}
    s_cselect_b32 s{sT2}, s{sT2}, 0
    s_add_u32 s{sTE}, s{sTE}, s{sT2}
    s_add_u32 s{sTL}, s{sTE}, s{sT3}
    """)
    mk_srd(c, rW2, pW2, 1792 * 896)
    mk_srd(c, rWO, pWO, 448 * 896)
    mk_srd(c, rOUT, pOUT, 2048 * 896)
    c(f"""
    s_mul_i32 s{sLw}, s{sW}, 20480
    s_lshl_b32 s{sT0}, s{sCB}, 7
    s_mul_i32 s{sWoff}, s{sW}, {224*896}
    s_add_u32 s{sWoff}, s{sWoff}, s{sT0}
    s_mul_i32 s{sXoff}, s{sW}, {56*896}
    s_add_u32 s{sXoff}, s{sXoff}, s{sT0}
    v_lshlrev_b32 v1, 4, v0
    v_bfe_u32 v8, v0, 4, 1
    v_lshlrev_b32 v8, 6, v8
    v_and_b32 v9, 0x70, v1
    v_xor_b32 v8, v8, v9
    v_lshrrev_b32 v9, 3, v0
    v_mul_u32_u24 v9, 896, v9
    v_add_u32 v{vSrc}, v8, v9
    """)
    c("s_waitcnt lgkmcnt(0)\ns_barrier")
    stamp(c, 5)
    for j in range(20):
        c.add(dma(vSrc, rW2, sWoff, 8 * j * 896, j * 1024, f"w{j//2}"))
        if j == 5:
            c(f"s_waitcnt vmcnt(6)\nbuffer_store_dword v{vOne}, v{vFin}, {srd(rWS)}, s{sFin} offen sc1")
    c(f"""
    v_bfe_u32 v8, v0, 2, 2
    v_lshrrev_b32 v9, 5, v0
    v_lshl_add_u32 v9, v9, 2, v8
    v_lshlrev_b32 v9, 7, v9
    v_bfe_u32 v8, v0, 3, 1
    v_lshl_add_u32 v9, v8, 6, v9
    v_bfe_u32 v8, v0, 4, 1
    v_lshl_add_u32 v9, v8, 5, v9
    v_and_b32 v8, 3, v0
    v_lshl_add_u32 v9, v8, 3, v9
    v_add_u32 v{vRd}, s{sLw}, v9
    v_xor_b32 v{vRd+1}, 64, v{vRd}
    s_mul_i32 s{sT0}, s{sW}, 14
    s_mul_i32 s{sT1}, s{sTE}, 112
    s_add_u32 s{sT1}, s{sT1}, s{sT0}
    s_lshl_b32 s83, s{sT1}, 10
    s_mul_i32 s{sT1}, s{sTL}, 112
    s_add_u32 s{sT1}, s{sT1}, s{sT0}
    s_lshl_b32 s84, s{sT1}, 10
    s_lshl_b32 s{sT0}, s{sW}, 12
    s_add_u32 s{sT0}, s{sT0}, {hex(O_OFF)}
    s_lshl_b32 s85, s{sTE}, 15
    s_add_u32 s85, s85, s{sT0}
    s_lshl_b32 s86, s{sTL}, 15
    s_add_u32 s86, s86, s{sT0}
    s_lshl_b32 s{sT0}, s{sW}, 7
    s_add_u32 s{sT0}, s{sT0}, {hex(GC_OFF)}
    s_lshl_b32 s87, s{sTE}, 10
    s_add_u32 s87, s87, s{sT0}
    s_lshl_b32 s88, s{sTL}, 10
    s_add_u32 s88, s88, s{sT0}
    v_and_b32 v5, 31, v0
    v_lshlrev_b32 v5, 2, v5
    s_lshr_b32 s{sHoff}, s83, 6
    s_add_u32 s{sHoff}, s{sHoff}, {hex(HF_OFF)}
    s_lshr_b32 s{sRNG}, s84, 6
    s_add_u32 s{sRNG}, s{sRNG}, {hex(HF_OFF)}
    v_min_u32 v44, 13, v0
    v_lshlrev_b32 v44, 4, v44
    s_lshr_b32 s{sT0}, s{sW}, 1
    s_lshl_b32 s{sT0}, s{sT0}, 7
    s_and_b32 s{sT1}, s{sW}, 1
    s_lshl_b32 s{sT1}, s{sT1}, 4
    s_add_u32 s{sT0}, s{sT0}, s{sT1}
    s_add_u32 s{sGRP}, s{sT0}, {hex(OF_OFF)}
    s_lshl_b32 s{sT0}, s{sTE}, 9
    s_lshl_b32 s{sT1}, s{sTL}, 9
    v_mov_b32 v45, s{sT1}
    v_mov_b32 v46, s{sT0}
    v_cmp_eq_u32 vcc, 0, v0
    v_cndmask_b32 v45, v45, v46, vcc
    """)
    poll_issue(c, 47, 44, rWS, f"s{sHoff}")

    def wreads(p, rowoff):
        r = S()
        for cc in range(2):
            for rd in range(2):
                r(f"ds_read_b64_tr_b16 {vr(WF+8*p+4*cc+2*rd,2)}, v{vRd+cc} offset:{(rowoff+8*rd)*128}", f"r{p}")
        return r

    def hload(n):
        if n < 28:
            tt, p = n // 14, n % 14
            g = S()
            if p and p % 4 == 0:
                g(f"s_add_u32 s{83+tt}, s{83+tt}, 4096")
            g(f"buffer_load_dwordx4 {vr(HR+4*(n%NR))}, v1, {srd(rWS)}, s{83+tt} offen offset:{1024*(p%4)} sc1")
            return g
        tt, q = (n - 28) // 4, (n - 28) % 4
        return S()(f"buffer_load_dwordx4 {vr(HR+4*(n%NR))}, v1, {srd(rWS)}, s{85+tt} offen offset:{1024*q} sc1")

    for p in range(10):
        c(f"WAIT w{p}")
        c.add(wreads(p, 16 * p))
        if p >= 1 and p - 1 < 8:
            c(f"WAIT r{p-1}")
            for j in (2 * (p - 1), 2 * (p - 1) + 1):
                if j < 8:
                    c.add(dma(vSrc, rW2, sWoff, 8 * (20 + j) * 896, j * 1024, f"w{10+j//2}"))
                else:
                    c.add(dma(vSrc, rWO, sXoff, 8 * (j - 8) * 896, j * 1024, "wo"))
    stamp(c, 6)
    poll_check(c, 47, 44, rWS, f"s{sHoff}")
    stamp(c, 7)
    for p in range(PD):
        c.add(hload(p))
    for n in range(36):
        if n < 28:
            tt, p = n // 14, n % 14
        else:
            tt, p = (n - 28) // 4, 14 + (n - 28) % 4
        if n == 6:
            for pp in range(10, 14):
                c(f"WAIT w{pp}")
                c.add(wreads(pp, 16 * (pp - 10)))
        if n == 12:
            c("WAIT wo")
            for q in range(4):
                c.add(wreads(14 + q, 64 + 28 * (q >> 1) + 16 * (q & 1)))
        if n == 28:
            for t2 in range(2):
                for j in range(32):
                    c(f"v_mul_f32 v{ACC+32*t2+j}, v{ACC+32*t2+j}, v{vG+t2}")
        for cc in range(2):
            c.append(mfma(ACC + 32 * tt + 16 * cc, WF + 8 * p + 4 * cc, HR + 4 * (n % NR), p == 0))
        if n + PD == 10:
            poll_issue(c, 47, 44, rWS, f"s{sRNG}")
        if n + PD == 14:
            poll_check(c, 47, 44, rWS, f"s{sRNG}")
            stamp(c, 8)
        if n + PD == 24:
            poll_issue(c, 47, 45, rWS, f"s{sGRP}")
        if n + PD == 28:
            poll_check(c, 47, 45, rWS, f"s{sGRP}")
            stamp(c, 9)
            for t2 in range(2):
                c(f"buffer_load_dword v{vG+t2}, v5, {srd(rWS)}, s{87+t2} offen sc1")
        if n + PD < 36:
            c.add(hload(n + PD))
    c(f"""
    v_and_b32 v8, 7, v0
    v_lshrrev_b32 v9, 5, v0
    v_xor_b32 v9, v9, v8
    v_lshlrev_b32 v9, 4, v9
    v_and_b32 v10, 31, v0
    v_lshl_add_u32 v9, v10, 8, v9
    v_add_u32 v12, s{sLw}, v9
    v_xor_b32 v13, 32, v12
    v_xor_b32 v14, 64, v12
    v_xor_b32 v15, 0x60, v12
    v_lshrrev_b32 v9, 3, v0
    v_lshlrev_b32 v10, 1, v8
    v_xor_b32 v10, v10, v9
    v_lshlrev_b32 v10, 4, v10
    s_lshl_b32 s{sT0}, s{sW}, 11
    v_lshl_add_u32 v10, v9, 8, v10
    v_add_u32 v16, s{sT0}, v10
    v_xor_b32 v17, 16, v16
    v_add_u32 v18, {4*20480}, v16
    v_add_u32 v19, {4*20480}, v17
    v_mul_u32_u24 v9, 896, v9
    v_lshl_add_u32 v20, v8, 4, v9
    s_cmp_ge_u32 s{sW}, 4
    s_cselect_b32 s{sT0}, s{sTL}, s{sTE}
    s_lshl_b32 s{sT0}, s{sT0}, 2
    s_and_b32 s{sT1}, s{sW}, 3
    s_add_u32 s{sT0}, s{sT0}, s{sT1}
    s_mul_i32 s{sT0}, s{sT0}, {8*896}
    s_lshl_b32 s{sT1}, s{sCB}, 7
    s_add_u32 s{sT0}, s{sT0}, s{sT1}
    """)
    stamp(c, 10)
    for tt in range(2):
        for cc in range(2):
            for q in range(4):
                c(f"ds_write_b128 v{12+q}, {vr(ACC+32*tt+16*cc+4*q)} offset:{cc*128+tt*8192}")
    c("WAIT lg*\ns_barrier")
    for src in range(8):
        for e in range(2):
            c(f"ds_read_b128 {vr(112+8*src+4*e)}, v{16+2*(src>>2)+e} offset:{20480*(src&3)}")
    for src in range(1, 8):
        for j in range(8):
            c(f"v_add_f32 v{112+j}, v{112+j}, v{112+8*src+j}")
    for j in range(4):
        c(f"v_cvt_pk_bf16_f32 v{112+j}, v{112+2*j}, v{112+2*j+1}")
    c(f"buffer_store_dwordx4 v[112:115], v20, {srd(rOUT)}, s{sT0} offen")
    return c


KD = """.section .rodata,"a"
.p2align 6
.amdhsa_kernel {name}
  .amdhsa_next_free_vgpr 256
  .amdhsa_next_free_sgpr 102
  .amdhsa_accum_offset 256
  .amdhsa_group_segment_fixed_size 0
  .amdhsa_kernarg_size 96
  .amdhsa_user_sgpr_count 2
  .amdhsa_user_sgpr_kernarg_segment_ptr 1
  .amdhsa_system_sgpr_workgroup_id_x 1
.end_amdhsa_kernel
.text
"""


def kern(name, body):
    return f".globl {name}\n.p2align 8\n.type {name},@function\n{name}:\n{body}" + KD.format(name=name)


def finale():
    c = S()
    if STAMPS:
        c("s_waitcnt vmcnt(0)\ns_memrealtime s[100:101]\ns_waitcnt lgkmcnt(0)")
        for k in range(12):
            c(f"v_writelane_b32 v2, s{89+k}, {k}")
        c(f"""
        s_lshl_b32 s{sT0}, s2, 3
        s_add_u32 s{sT0}, s{sT0}, s{sW}
        s_lshl_b32 s{sT0}, s{sT0}, 6
        s_add_u32 s{sT0}, s{sT0}, {hex(ST_OFF)}
        v_lshlrev_b32 v3, 2, v0
        s_mov_b64 exec, 0xfff
        buffer_store_dword v2, v3, {srd(rWS)}, s{sT0} offen
        """)
    return c


def build():
    k = S()
    if STAMPS:
        for j in range(89, 100):
            k(f"s_mov_b32 s{j}, 0")
    head(k, "L_end")
    k(f"s_cmp_ge_u32 s{sSLOT}, 28\ns_cbranch_scc1 L_q\ns_cmp_ge_u32 s{sSLOT}, 20\ns_cbranch_scc1 L_kv")
    t = finish(k) + finish(role_ffn("L_p2"))
    t += "L_janitor:\n" + finish(janitor("L_p2"))
    t += "L_q:\n" + finish(role_attn(True, "L_fin"))
    t += "L_kv:\n" + finish(role_attn(False, "L_p2"))
    t += "L_p2:\n" + finish(phase2("L_fin")) + "L_fin:\n" + finish(finale()) + "L_end:\n    s_endpgm\nL_code_end:\n"
    top = "; @launch grid=(256,1,1) block=(512,1,1) lds=163840\n"
    return top + '.amdgcn_target "amdgcn-amd-amdhsa--gfx950"\n.text\n' + kern(NAME + "_kernel", t)


if __name__ == "__main__":
    STAMPS = "stamps" in sys.argv
    PREF = "nopref" not in sys.argv
    open(sys.argv[1], "w").write(build())
```

```python
import sys, importlib
K = 10
def amp_kernel(col, lo, hi, mode, k=K):
    b = f"""    s_cmp_ge_u32 s2, 1
    s_cbranch_scc1 La_x
    s_load_dwordx2 s[4:5], s[0:1], 88
    s_waitcnt lgkmcnt(0)
    s_mov_b32 s6, 0xA00000
    s_mov_b32 s7, 0x20000
    v_lshlrev_b32 v1, 6, v0
    s_mov_b32 s8, 0x9D0000
"""
    for it in range(32):
        b += f"    buffer_load_dword v{10+it}, v1, s[4:7], s8 offen\n    buffer_load_dword v{50+it}, v1, s[4:7], s8 offen offset:{4*col}\n    s_add_u32 s8, s8, 4096\n"
        if it == 15: b += "    s_waitcnt vmcnt(0)\n"
    b += "    s_waitcnt vmcnt(0)\n    v_mov_b32 v2, v10\n"
    for it in range(1, 32): b += f"    v_min_u32 v2, v2, v{10+it}\n"
    b += "    s_nop 1\n    v_readlane_b32 s10, v2, 0\n"
    for l in range(1, 64): b += f"    v_readlane_b32 s11, v2, {l}\n    s_nop 1\n    s_min_u32 s10, s10, s11\n"
    b += "    v_mov_b32 v3, 0\n    v_mov_b32 v4, 0\n    v_mov_b32 v6, 0\n"
    for it in range(lo, hi):
        b += f"    v_cmp_ne_u32 vcc, 0, v{50+it}\n    v_subrev_u32 v5, s10, v{50+it}\n    s_nop 1\n    v_cndmask_b32 v5, v6, v5, vcc\n"
        b += "    v_max_u32 v3, v3, v5\n" if mode == "max" else "    v_add_u32 v3, v3, v5\n    v_addc_co_u32 v4, vcc, v4, v6, vcc\n"
    b += "    s_nop 1\n    s_mov_b32 s12, 0\n    s_mov_b32 s13, 0\n"
    for l in range(64):
        b += f"    v_readlane_b32 s11, v3, {l}\n    v_readlane_b32 s14, v4, {l}\n    s_nop 1\n"
        b += "    s_max_u32 s12, s12, s11\n" if mode == "max" else "    s_add_u32 s12, s12, s11\n    s_add_u32 s13, s13, s14\n"
    if mode == "max":
        b += f"    s_mul_i32 s12, s12, {k}\n"
    else:
        b += f"    s_mul_i32 s12, s12, {k}\n    v_cvt_f32_u32 v7, s12\n    v_cvt_f32_u32 v8, s13\n    v_rcp_f32 v8, v8\n    s_nop 1\n    v_mul_f32 v7, v7, v8\n    v_cvt_u32_f32 v7, v7\n    s_nop 1\n    v_readfirstlane_b32 s12, v7\n    s_nop 3\n"
    b += """    s_min_u32 s12, s12, 100000
    s_memrealtime s[16:17]
    s_waitcnt lgkmcnt(0)
    s_mov_b32 s20, 200000
La_l:
    s_memrealtime s[18:19]
    s_waitcnt lgkmcnt(0)
    s_sub_u32 s18, s18, s16
    s_sub_u32 s20, s20, 1
    s_cmp_eq_u32 s20, 0
    s_cbranch_scc1 La_x
    s_cmp_lt_u32 s18, s12
    s_cbranch_scc1 La_l
La_x:
    s_endpgm
"""
    return b
def make(genname, out, col, lo, hi, mode, k=K, **opts):
    G = importlib.import_module(genname)
    G.STAMPS = True
    for kk, v in opts.items(): setattr(G, kk, v)
    N = G.NAME + "_kernel"
    base = G.build().split("\n", 1)[1]
    top = f"; @launch kernel={N} grid=(256,1,1) block=(512,1,1) lds=163840\n; @launch kernel=amp_kernel grid=(1,1,1) block=(64,1,1) lds=0\n"
    open(out, "w").write(top + base + G.kern("amp_kernel", amp_kernel(col, lo, hi, mode, k)))
if __name__ == "__main__":
    gen = sys.argv[1]
    make(gen, "am_0.s", 11, 0, 32, "max", k=0)
    for i, spec in enumerate(sys.argv[2:]):
        col, lo, hi, mode = spec.split(",")
        make(gen, f"am_{i+1}.s", int(col), int(lo), int(hi), mode)
```

```python
import re

_REG = re.compile(r"(?<![\w.])(?:([vs])\[(\d+):(\d+)\]|([vs])(\d+)(?![\w])|(vcc|exec|m0)(?![\w]))")
TRANS = ("v_exp_f32", "v_log_f32", "v_rcp_f32", "v_rsq_f32", "v_sqrt_f32", "v_sin_f32", "v_cos_f32")


def regs_of(op):
    out = set()
    for m in _REG.finditer(op):
        if m.group(1):
            out.update((m.group(1), i) for i in range(int(m.group(2)), int(m.group(3)) + 1))
        elif m.group(4):
            out.add((m.group(4), int(m.group(5))))
        else:
            out.add((m.group(6), 0))
    return out


def split_ops(s):
    ops, depth, cur = [], 0, ""
    for ch in s:
        if ch in "[(":
            depth += 1
        elif ch in "])":
            depth -= 1
        if ch == "," and depth == 0:
            ops.append(cur.strip())
            cur = ""
        else:
            cur += ch
    if cur.strip():
        ops.append(cur.strip())
    return ops


class I:
    def __init__(self, text, tag=None):
        self.text = text.strip()
        self.tag = tag
        self.r, self.w = set(), set()
        self.srcc = set()
        self.srcab = set()
        self.data = set()
        t = self.text
        if t.endswith(":"):
            self.kind, self.mn = "label", t
            return
        if t.startswith(";") or t.startswith("."):
            self.kind, self.mn = "note", t
            return
        if t.startswith("RAW "):
            self.text = t[4:]
            self.kind, self.mn = "note", t
            return
        assert not (t.startswith("v_pk_") and re.search(r"op_sel:\[[^\]]*1", t)), "low-from-high select is unsafe beside MFMA"
        parts = t.split(None, 1)
        mn = self.mn = parts[0]
        ops = split_ops(parts[1]) if len(parts) > 1 else []
        R = [regs_of(o) for o in ops]
        allr = set().union(*R) if R else set()
        rest = set().union(*R[1:]) if len(R) > 1 else set()
        if mn == "WAIT":
            self.kind = "pwait"
            self.tags = parts[1].split()
        elif mn == "DRAINED":
            self.kind = "pdrain"
            self.what = parts[1].split()
        elif mn.startswith("v_mfma"):
            self.kind = "mfma"
            self.w, self.r = R[0], rest
            self.srcab = R[1] | R[2]
            self.srcc = R[3]
            self.passes = 8 if "32x32" in mn else 4
        elif mn.startswith("buffer_load") or mn.startswith("global_load"):
            if re.search(r"\blds\b", t):
                self.kind = "dma"
                self.r = allr | {("m0", 0)}
            else:
                self.kind = "vload"
                self.w, self.r = R[0], rest
                if "d16" in mn:
                    self.merge = True
        elif mn.startswith("buffer_store") or mn.startswith("buffer_atomic"):
            self.kind = "vstore"
            self.r = allr
            if "x4" in mn or "x3" in mn:
                self.data = R[0]
        elif mn.startswith("ds_read") or (mn.startswith("ds_") and "_rtn" in mn):
            self.kind = "dsread"
            self.w, self.r = R[0], rest
        elif mn.startswith("ds_"):
            self.kind = "dswrite"
            self.r = allr
        elif mn.startswith("v_permlane"):
            self.kind = "valu"
            self.w, self.r = allr, allr
        elif mn.startswith("v_"):
            self.kind = "trans" if mn.replace("_e32", "").replace("_e64", "") in TRANS else "valu"
            self.w, self.r = R[0], rest
            if mn.startswith("v_fmac") or mn.startswith("v_dot2c"):
                self.r = allr
        elif mn in ("s_barrier", "s_endpgm", "s_nop", "s_sleep", "s_setprio", "s_waitcnt"):
            self.kind = {"s_barrier": "barrier", "s_waitcnt": "wait"}.get(mn, "misc")
        elif mn.startswith("s_cbranch") or mn == "s_branch":
            self.kind = "branch"
            if "vcc" in mn:
                self.r = {("vcc", 0)}
        elif mn.startswith("s_load") or mn in ("s_memtime", "s_memrealtime"):
            self.kind = "smem"
            self.w, self.r = R[0], rest
        elif mn.startswith("s_cmp") or mn.startswith("s_bitcmp"):
            self.kind = "salu"
            self.r = allr
        elif mn.startswith("s_"):
            self.kind = "salu"
            self.w, self.r = R[0], rest
            if "saveexec" in mn:
                self.w = self.w | {("exec", 0)}
        else:
            raise ValueError("unknown instruction: " + t)

    def states(self):
        if self.kind in ("label", "note", "pwait", "pdrain"):
            return 0
        if self.mn == "s_nop":
            return int(self.text.split()[1], 0) + 1
        return 1

    def is_valu(self):
        return self.kind in ("valu", "trans")

    def is_vmem(self):
        return self.kind in ("vload", "vstore", "dma")


class S(list):
    def __call__(self, text, tag=None):
        for line in text.strip().split("\n"):
            line = line.strip()
            if line:
                self.append(I(line, tag))
        return self

    def add(self, other):
        self.extend(other)
        return self


def weave(main, fill, start=0, end=None, is_slot=lambda i: i.kind == "mfma"):
    groups = [g if isinstance(g, list) else [g] for g in fill]
    slots = [k for k, ins in enumerate(main) if is_slot(ins)]
    slots = slots[start:end]
    out = S()
    if not slots:
        out.add(main)
        for g in groups:
            out.add(g)
        return out
    after = {k: [] for k in slots}
    n, m = len(groups), len(slots)
    for j, g in enumerate(groups):
        after[slots[min(m - 1, j * m // max(n, 1))]].extend(g)
    for k, ins in enumerate(main):
        out.append(ins)
        if k in after:
            out.extend(after[k])
    return out


def insert_waits(code):
    out = S()
    vm, lg = [], []

    def need(q, pred):
        best = None
        for k, e in enumerate(q):
            if pred(e):
                best = len(q) - 1 - k
        return best

    def emit(nv, nl):
        parts = []
        if nv is not None:
            nv = min(nv, 63)
            parts.append(f"vmcnt({nv})")
            del vm[: len(vm) - nv]
        if nl is not None:
            if any(e.kind == "smem" for e in lg):
                nl = 0
            nl = min(nl, 15)
            parts.append(f"lgkmcnt({nl})")
            del lg[: len(lg) - nl]
        if parts:
            out.append(I("s_waitcnt " + " ".join(parts)))

    for ins in code:
        if ins.kind == "pwait":
            nv = need(vm, lambda e: e.tag in ins.tags or "vm*" in ins.tags)
            nl = need(lg, lambda e: e.tag in ins.tags or "lg*" in ins.tags)
            emit(nv, nl)
            continue
        if ins.kind == "pdrain":
            if "vm" in ins.what:
                vm.clear()
            if "lg" in ins.what:
                lg.clear()
            continue
        if ins.kind == "wait":
            m = re.search(r"vmcnt\((\d+)\)", ins.text)
            if m:
                del vm[: max(0, len(vm) - int(m.group(1)))]
            m = re.search(r"lgkmcnt\((\d+)\)", ins.text)
            if m and (int(m.group(1)) == 0 or not any(e.kind == "smem" for e in lg)):
                del lg[: max(0, len(lg) - int(m.group(1)))]
            out.append(ins)
            continue
        touched = ins.r | ins.w
        if touched:
            merge = getattr(ins, "merge", False)
            nv = need(vm, lambda e: bool(e.w & (ins.r if (merge and getattr(e, "merge", False)) else touched)))
            nl = need(lg, lambda e: bool(e.w & touched))
            emit(nv, nl)
        out.append(ins)
        if ins.is_vmem():
            vm.append(ins)
        elif ins.kind in ("dsread", "dswrite", "smem"):
            lg.append(ins)
    return out


def _required(p, c):
    n = 0
    pv = {x for x in p.w if x[0] == "v"}
    ps = {x for x in p.w if x[0] in ("s", "vcc")}
    if p.is_valu():
        if c.kind == "mfma" and pv & c.r:
            n = max(n, 2)
        if c.mn.startswith("v_permlane") and pv & c.r:
            n = max(n, 2)
        if "dpp" in c.text and c.is_valu() and pv & c.r:
            n = max(n, 2)
        if (c.mn.startswith("v_readfirstlane") or c.mn.startswith("v_readlane")) and pv & c.r:
            n = max(n, 1)
        if p.kind == "trans" and (c.is_valu() or c.kind == "mfma") and pv & c.r:
            n = max(n, 1)
        if ("op_sel" in p.text or "sdwa" in p.text) and c.is_valu() and pv & (c.r | c.w):
            n = max(n, 1)
        if ps & c.r:
            if c.is_valu():
                n = max(n, 4 if "lane" in c.mn else 2)
            if c.is_vmem():
                n = max(n, 5)
            if c.kind in ("salu", "smem"):
                n = max(n, 2)
            if c.kind == "branch":
                n = max(n, 5)
        if ("exec", 0) in p.w:
            n = max(n, 5)
    if p.kind == "mfma":
        big = {8: 12, 4: 8}[p.passes]
        if c.kind == "mfma":
            if p.w & c.srcab:
                n = max(n, big)
            if p.w & c.srcc and not (p.w == c.srcc and p.passes == c.passes):
                n = max(n, big - 2)
            if p.w & c.w and not (p.w == c.srcc and p.passes == c.passes):
                n = max(n, big)
        elif p.w & (c.r | c.w):
            n = max(n, big)
        if c.kind != "mfma" and p.srcc & c.w:
            n = max(n, {8: 7, 4: 3}[p.passes])
    if p.kind == "salu" and ("m0", 0) in p.w and (c.kind == "dma" or "addtid" in c.mn):
        n = max(n, 1)
    if p.kind == "vstore" and p.data & c.w:
        n = max(n, 2)
    return n


def insert_nops(code):
    out = S()
    for ins in code:
        if ins.states() and ins.mn != "s_nop":
            dist, pad = 0, 0
            for p in reversed(out):
                if dist >= 20:
                    break
                req = _required(p, ins)
                if req > dist:
                    pad = max(pad, req - dist)
                dist += p.states()
            while pad > 0:
                k = min(pad, 16)
                out.append(I(f"s_nop {k - 1}"))
                pad -= k
        out.append(ins)
    return out


def finish(code):
    code = insert_nops(insert_waits(code))
    lines = []
    for ins in code:
        lines.append(ins.text if ins.kind == "label" else "    " + ins.text)
    return "\n".join(lines) + "\n"


def cost(ins):
    if ins.kind == "trans":
        return 8
    if ins.kind == "valu":
        return 4
    return 0


def weave_cost(main, fill, start=0, end=None):
    slots = [k for k, ins in enumerate(main) if ins.kind == "mfma"][start:end]
    total = sum(cost(i) for i in fill) or 1
    after = {k: [] for k in slots}
    acc = 0
    for ins in fill:
        j = min(len(slots) - 1, int((acc + cost(ins) / 2) * len(slots) / total))
        after[slots[j]].append(ins)
        acc += cost(ins)
    out = S()
    for k, ins in enumerate(main):
        out.append(ins)
        if k in after:
            out.extend(after[k])
    return out


def place(main, at):
    out, n = S(), 0
    for ins in main:
        if ins.kind == "mfma":
            if n in at:
                out.extend(at[n])
            n += 1
        out.append(ins)
    if n in at:
        out.extend(at[n])
    return out


def sprinkle(main, groups, lo, hi):
    total = sum(cost(i) for i in main)
    marks = [total * (lo + (hi - lo) * k / max(len(groups), 1)) for k in range(len(groups))]
    out, acc, k = S(), 0, 0
    for ins in main:
        while k < len(groups) and acc >= marks[k]:
            out.extend(groups[k])
            k += 1
        out.append(ins)
        acc += cost(ins)
    for g in groups[k:]:
        out.extend(g)
    return out
```

```python
import sys
from asmlib import *

NAME = "gated_mix__linear_kernel_hedgehog__glu_gated_swiglu__prompt"
H_OFF, O_OFF, KVP_OFF, GC_OFF, WS_SIZE = 0, 0x700000, 0x900000, 0x980000, 0xA00000
HF_OFF, OF_OFF, KF_OFF, ST_OFF = 0x990000, 0x9AC000, 0x9BC000, 0x9D0000
ROT = 4
PRIO = True
CNT = 155648
SLEEP = 4
STAMPS = False
PREF = True
SPIN = 40000
PD = 8
L2E = "0x3fb8aa3b"
SL = [0, 98304, 49152]
XB = 98304
OOB = 0x4000000
RG = 12288

pX, pQKV, pPHI, pWO, pW1, pW3, pW2, pGATE, pOUT, pDBG, pWS = 4, 6, 8, 10, 14, 16, 18, 20, 22, 24, 26
rX, rA, rB, rWS, rW2, rWO, rOUT, rD = 28, 32, 36, 40, 44, 48, 52, 56
rG = rW2
sFin = 3
sL2, sW2, sWO, sFE, sFL, sFO, sSEL, sTG, sHD, sOut = 4, 5, 10, 11, 12, 13, 18, 19, 22, 23
sW, sXCD, sSLOT = 60, 61, 62
sT0, sT1, sT2, sT3 = 63, 64, 65, 66
sWoff, sXoff, sLw, sL2E, sHoff, sRNG, sGRP, sSo, sCnt = 67, 68, 69, 70, 71, 72, 73, 74, 75
sM0, sM1 = 76, 78
sTE, sTL, sCB = 80, 81, 82
sH, sO, sG = 83, 85, 87
sKc, sWk, sXk = 24, 25, 26
vSrc2, vRd2, vFH, vFO, vGC, vPoll, vFin, vOne, vRA = 10, 11, 13, 14, 15, 16, 17, 18, 19
vT = 28
WREG = [80, 88, 20, 144, 152, 160, 96, 104, 168, 176, 184, 192, 112, 120, 80, 88, 144, 152]
ACC2 = [[32, 48], [64, 128]]
HR, NR = 200, 12
_lbl = [0]


def srd(r):
    return f"s[{r}:{r+3}]"


def vr(a, n=4):
    return f"v[{a}:{a+n-1}]" if n > 1 else f"v{a}"


def mk_srd(c, r, p, size):
    c(f"s_mov_b32 s{r}, s{p}\ns_mov_b32 s{r+1}, s{p+1}\ns_mov_b32 s{r+2}, {hex(size)}\ns_mov_b32 s{r+3}, 0x20000")


def sdiv(c, q, rem, src, d, maxv):
    for sh in range(4, 20):
        m = -(-(1 << sh) // d)
        if all((v * m) >> sh == v // d for v in range(maxv + 1)):
            break
    c(f"s_mul_i32 s{q}, s{src}, {m}\ns_lshr_b32 s{q}, s{q}, {sh}")
    if rem is not None:
        c(f"s_mul_i32 s{rem}, s{q}, {d}\ns_sub_u32 s{rem}, s{src}, s{rem}")


def mfma(d, a, b, first=False):
    cc = "0" if first else vr(d, 16)
    return I(f"v_mfma_f32_32x32x16_bf16 {vr(d,16)}, {vr(a)}, {vr(b)}, {cc}")


def dma(vaddr, r, sbase, soff, ldsoff, tag, mask=None, lbase=sLw):
    g = S()
    g(f"s_add_u32 m0, s{lbase}, {ldsoff}\ns_add_u32 s{sSo}, s{sbase}, {soff}")
    if mask is not None:
        g(f"s_mov_b64 exec, s[{mask}:{mask+1}]")
    g(f"buffer_load_dwordx4 v{vaddr}, {srd(r)}, s{sSo} offen lds", tag)
    if mask is not None:
        g("s_mov_b64 exec, -1")
    return g


def stamp(c, k):
    if STAMPS:
        c(f"s_memrealtime s[100:101]\ns_waitcnt lgkmcnt(0)\ns_mov_b32 s{89+k}, s100")


def poll_issue(c, vA, r, soff):
    c(f"buffer_load_dword v{vPoll}, v{vA}, {srd(r)}, {soff} offen sc1", "poll")


def poll_check(c, vA, r, soff):
    _lbl[0] += 1
    n = _lbl[0]
    c(f"""
    v_cmp_eq_u32 vcc, 0, v{vPoll}
    s_cbranch_vccz L_ok{n}
    RAW s_mov_b32 s{sCnt}, {SPIN}
    L_sp{n}:
    RAW s_sleep {SLEEP}
    RAW buffer_load_dword v{vPoll}, v{vA}, {srd(r)}, {soff} offen sc1
    RAW s_waitcnt vmcnt(0)
    RAW v_cmp_eq_u32 vcc, 0, v{vPoll}
    RAW s_sub_u32 s{sCnt}, s{sCnt}, 1
    RAW s_cmp_eq_u32 s{sCnt}, 0
    RAW s_cbranch_scc1 L_ok{n}
    RAW s_nop 1
    RAW s_cbranch_vccnz L_sp{n}
    L_ok{n}:
    """)


def ready_issue(c):
    c(f"v_min_u32 v{vRA}, 5, v0\nv_lshlrev_b32 v{vRA}, 2, v{vRA}")
    poll_issue(c, vRA, rD, "0")


def ready_check(c):
    poll_check(c, vRA, rD, "0")


def flag_store(soff, va=vFin):
    return I(f"buffer_store_dword v{vOne}, v{va}, {srd(rWS)}, s{soff} offen sc1")


def head(c, end):
    c(f"""
    s_cmp_ge_u32 s2, 256
    s_cbranch_scc1 {end}
    s_load_dwordx16 s[4:19], s[0:1], 0
    s_load_dwordx8 s[20:27], s[0:1], 64
    v_lshrrev_b32 v1, 6, v0
    v_and_b32 v0, 63, v0
    v_readfirstlane_b32 s{sW}, v1
    s_and_b32 s{sXCD}, s2, 7
    s_lshr_b32 s{sSLOT}, s2, 3
    s_mov_b32 s{sL2E}, {L2E}
    """)
    if PREF:
        c(f"""
        s_getpc_b64 s[{rB}:{rB+1}]
        s_and_b32 s{rB}, s{rB}, 0xffffff00
        s_mov_b32 s{rB+2}, L_code_end-{NAME}_kernel
        s_mov_b32 s{rB+3}, 0x20000
        s_and_b32 s{sT0}, s{sSLOT}, 7
        s_lshl_b32 s{sT0}, s{sT0}, 3
        s_add_u32 s{sT0}, s{sT0}, s{sW}
        s_mul_i32 s{sT0}, s{sT0}, 640
        v_min_u32 v2, 4, v0
        v_lshlrev_b32 v2, 7, v2
        buffer_load_dword v{vPoll}, v2, {srd(rB)}, s{sT0} offen
        """)
    c(f"""
    v_mov_b32 v{vOne}, 1
    v_cmp_eq_u32 vcc, 0, v0
    v_mov_b32 v{vFin}, {hex(OOB)}
    v_lshlrev_b32 v1, 4, v0
    s_lshl_b32 s{sLw}, s{sW}, 10
    v_cndmask_b32 v{vFin}, v{vFin}, v0, vcc
    """)
    x_src(c, 4, vT, vT + 1)
    rot_init(c)
    if PRIO:
        c("s_setprio 1")
    c("s_waitcnt lgkmcnt(0)")
    stamp(c, 0)
    mk_srd(c, rX, pX, 2048 * 896)
    late_srds(c)


def rot_init(c):
    c(f"""
    s_lshr_b32 s{sCnt}, s{sXCD}, 2
    s_xor_b32 s{sCnt}, s{sCnt}, s{sXCD}
    s_and_b32 s{sCnt}, s{sCnt}, 1
    s_mul_i32 s{sCnt}, s{sCnt}, {ROT}
    """)


def rot_bases(stride, first=False):
    g = S()
    if first:
        g(f"s_mov_b32 s{sKc}, s{sCnt}")
    else:
        g(f"s_add_u32 s{sKc}, s{sKc}, 1\ns_cmp_eq_u32 s{sKc}, 7\ns_cselect_b32 s{sKc}, 0, s{sKc}")
    if stride:
        g(f"s_mul_i32 s{sWk}, s{sKc}, {64*stride}\ns_add_u32 s{sWk}, s{sWk}, s{sWoff}")
    g(f"s_lshl_b32 s{sXk}, s{sKc}, 7\ns_add_u32 s{sXk}, s{sXk}, s{sXoff}")
    return g


def late_srds(c):
    mk_srd(c, rWS, pWS, WS_SIZE)
    mk_srd(c, rD, pDBG, 256)


def x_src(c, vsrc, t0, t1):
    c(f"""
    s_and_b32 s{sT0}, s{sW}, 1
    s_lshl_b32 s{sT0}, s{sT0}, 2
    v_lshrrev_b32 v{t0}, 4, v0
    v_add_u32 v{t0}, s{sT0}, v{t0}
    v_and_b32 v{t1}, 7, v0
    v_xor_b32 v{t0}, v{t0}, v{t1}
    v_lshlrev_b32 v{t0}, 4, v{t0}
    v_lshrrev_b32 v{t1}, 3, v0
    v_mul_u32_u24 v{t1}, 896, v{t1}
    v_add_u32 v{vsrc}, v{t0}, v{t1}
    """)


def x_rd(c, vrd, t0, t1, tokbase=None):
    c(f"""
    v_bfe_u32 v{t0}, v0, 1, 3
    v_lshrrev_b32 v{t1}, 5, v0
    v_xor_b32 v{t0}, v{t0}, v{t1}
    v_lshlrev_b32 v{t0}, 4, v{t0}
    v_and_b32 v{t1}, 31, v0
    v_lshl_add_u32 v{vrd}, v{t1}, 7, v{t0}
    """)
    if tokbase is not None:
        c(f"v_add_u32 v{vrd}, s{tokbase}, v{vrd}")
    for k in range(1, 4):
        c(f"v_xor_b32 v{vrd+k}, {32*k}, v{vrd}")


def p2_setup(c):
    a, b = vT, vT + 1
    mk_srd(c, rW2, pW2, 1792 * 896)
    mk_srd(c, rWO, pWO, 448 * 896)
    mk_srd(c, rOUT, pOUT, 2048 * 896)
    sdiv(c, sT0, sCB, sSLOT, 7, 32)
    c(f"""
    s_mul_i32 s{sT1}, s{sXCD}, 3
    s_add_u32 s{sT1}, s{sT1}, s{sT0}
    s_sub_u32 s{sT2}, s{sT1}, 12
    s_cmp_eq_u32 s{sT0}, 3
    s_cselect_b32 s{sT2}, s{sXCD}, s{sT2}
    s_cselect_b32 s{sT1}, 20, s{sT1}
    s_mul_i32 s{sTE}, s{sT2}, 6
    s_add_u32 s{sTE}, s{sTE}, 2
    s_lshl_b32 s{sT3}, s{sT2}, 1
    s_add_u32 s{sT3}, s{sT3}, 40
    s_cmp_ge_i32 s{sT2}, 10
    s_cselect_b32 s{sTE}, s{sT3}, s{sTE}
    s_lshr_b32 s{sT2}, s{sT1}, 1
    s_mul_i32 s{sT2}, s{sT2}, 6
    s_and_b32 s{sT3}, s{sT1}, 1
    s_add_u32 s{sT2}, s{sT2}, s{sT3}
    s_cmp_lt_u32 s{sT1}, 20
    s_cselect_b32 s{sTE}, s{sT2}, s{sTE}
    s_cselect_b32 s{sT3}, 4, 1
    s_add_u32 s{sTL}, s{sTE}, s{sT3}
    s_mul_i32 s{sL2}, s{sW}, {RG}
    s_lshl_b32 s{sT0}, s{sCB}, 7
    s_mul_i32 s{sW2}, s{sW}, {224*896}
    s_add_u32 s{sW2}, s{sW2}, s{sT0}
    s_mul_i32 s{sWO}, s{sW}, {56*896}
    s_add_u32 s{sWO}, s{sWO}, s{sT0}
    s_cmp_ge_u32 s{sW}, 4
    s_cselect_b32 s{sOut}, s{sTL}, s{sTE}
    s_mul_i32 s{sOut}, s{sOut}, {32*896}
    s_add_u32 s{sOut}, s{sOut}, s{sT0}
    s_and_b32 s{sT0}, s{sW}, 3
    s_lshl_b32 s{sT0}, s{sT0}, 5
    s_add_u32 s{sOut}, s{sOut}, s{sT0}
    s_mul_i32 s{sT0}, s{sW}, 14
    """)
    for tt, (st, sf) in enumerate(((sTE, sFE), (sTL, sFL))):
        c(f"""
        s_mul_i32 s{sT1}, s{st}, 112
        s_add_u32 s{sT1}, s{sT1}, s{sT0}
        s_lshl_b32 s{sH+tt}, s{sT1}, 10
        s_mul_i32 s{sf}, s{st}, 1792
        s_add_u32 s{sf}, s{sf}, {hex(HF_OFF)}
        s_lshl_b32 s{sT1}, s{st}, 3
        s_add_u32 s{sT1}, s{sT1}, s{sW}
        s_lshl_b32 s{sO+tt}, s{sT1}, 12
        s_add_u32 s{sO+tt}, s{sO+tt}, {hex(O_OFF)}
        s_lshl_b32 s{sG+tt}, s{sT1}, 7
        s_add_u32 s{sG+tt}, s{sG+tt}, {hex(GC_OFF)}
        """)
    c(f"""
    v_min_u32 v{vFH}, 13, v0
    v_add_u32 v{vFH}, s{sT0}, v{vFH}
    s_lshl_b32 s{sT0}, s{sW}, 7
    s_add_u32 s{sFO}, s{sT0}, {hex(OF_OFF)}
    s_lshl_b32 s{sT0}, s{sTE}, 10
    s_lshl_b32 s{sT1}, s{sTL}, 10
    v_mov_b32 v{vFO}, s{sT1}
    v_mov_b32 v{a}, s{sT0}
    v_cmp_eq_u32 vcc, 0, v0
    v_lshrrev_b32 v{vFH}, 3, v{vFH}
    v_lshlrev_b32 v{vFH}, 7, v{vFH}
    v_cndmask_b32 v{vFO}, v{vFO}, v{a}, vcc
    v_and_b32 v{vGC}, 31, v0
    v_lshlrev_b32 v{vGC}, 2, v{vGC}
    v_bfe_u32 v{a}, v0, 4, 1
    v_lshlrev_b32 v{a}, 6, v{a}
    v_and_b32 v{b}, 0x70, v1
    v_xor_b32 v{a}, v{a}, v{b}
    v_lshrrev_b32 v{b}, 3, v0
    v_mul_u32_u24 v{b}, 896, v{b}
    v_add_u32 v{vSrc2}, v{a}, v{b}
    v_bfe_u32 v{a}, v0, 2, 2
    v_lshrrev_b32 v{b}, 5, v0
    v_lshl_add_u32 v{b}, v{b}, 2, v{a}
    v_lshlrev_b32 v{b}, 7, v{b}
    v_bfe_u32 v{a}, v0, 3, 1
    v_lshl_add_u32 v{b}, v{a}, 6, v{b}
    v_bfe_u32 v{a}, v0, 4, 1
    v_lshl_add_u32 v{b}, v{a}, 5, v{b}
    v_and_b32 v{a}, 3, v0
    v_lshl_add_u32 v{b}, v{a}, 3, v{b}
    v_add_u32 v{vRd2}, s{sL2}, v{b}
    v_xor_b32 v{vRd2+1}, 64, v{vRd2}
    """)


def w2_dma(p):
    g = S()
    if p >= 6:
        g(f"WAIT r{p-6}")
    for j in range(2):
        g.add(dma(vSrc2, rW2, sW2, (16 * p + 8 * j) * 896, (p % 6) * 2048 + j * 1024, f"w{p}", lbase=sL2))
    return g


def wo_dma(j0, j1, after):
    g = S()
    g(f"WAIT {after}")
    for j in range(j0, j1):
        g.add(dma(vSrc2, rWO, sWO, 8 * j * 896, 4096 + j * 1024, "w14", lbase=sL2))
    return g


def w2_read(p):
    r = S()
    r(f"WAIT w{min(p, 14)}")
    row = 16 * (p % 6) if p < 14 else 32 + 28 * ((p - 14) >> 1) + 16 * ((p - 14) & 1)
    for cc in range(2):
        for rd in range(2):
            r(f"ds_read_b64_tr_b16 {vr(WREG[p]+4*cc+2*rd,2)}, v{vRd2+cc} offset:{(row+8*rd)*128}", f"r{p}")
    return r


def main_loop(c, reads, mfmas, dmas, rebase, tail):
    stamp(c, 1)
    c("WAIT st0 lg*\ns_barrier")
    stamp(c, 2)
    c.add(reads(0))
    pend = dmas(2)
    for g in range(28):
        nxt = g + 1
        if nxt % 4 == 0:
            s = nxt // 4
            if nxt < 28 or tail is not None:
                c(f"WAIT st{s} lg*\ns_barrier")
                c.add(rebase(s))
                pend = dmas(s + 2)
        rd = reads(nxt) if nxt < 28 else (tail or [])
        m = mfmas(g)
        per = -(-len(rd) // 3)
        take = -(-len(pend) // (4 - nxt % 4)) if pend else 0
        mine, pend = pend[:take], pend[take:]
        for k in range(4):
            c.append(m[k])
            if k < 3:
                c.add(rd[k * per:(k + 1) * per])
            if k >= 2 and mine:
                h = (len(mine) + 1) // 2 if k == 2 else len(mine)
                for grp in mine[:h]:
                    c.add(grp)
                mine = mine[h:]


def silu(a, t, packed=False):
    g = S()
    if packed:
        for i in range(0, 8, 2):
            g(f"v_pk_mul_f32 {vr(a+8+i,2)}, {vr(a+i,2)}, {vr(a+8+i,2)}")
        for i in range(0, 8, 2):
            g(f"v_pk_mul_f32 {vr(a+i,2)}, {vr(a+i,2)}, s[{sL2E}:{sL2E+1}] op_sel_hi:[1,0] neg_lo:[1,0] neg_hi:[1,0]")
        for i in range(8):
            g(f"v_exp_f32 v{a+i}, v{a+i}")
        for i in range(0, 8, 2):
            g(f"v_pk_add_f32 {vr(a+i,2)}, {vr(a+i,2)}, 1.0 op_sel_hi:[1,0]")
        for i in range(8):
            g(f"v_rcp_f32 v{a+i}, v{a+i}")
        for i in range(0, 8, 2):
            g(f"v_pk_mul_f32 {vr(a+8+i,2)}, {vr(a+8+i,2)}, {vr(a+i,2)}")
        for j in range(4):
            g(f"v_cvt_pk_bf16_f32 v{a+j}, v{a+8+2*j}, v{a+9+2*j}")
    else:
        for i in range(10):
            if i < 8:
                g(f"v_mul_f32 v{a+8+i}, v{a+i}, v{a+8+i}\nv_mul_f32_e64 v{a+i}, -s{sL2E}, v{a+i}")
            if 1 <= i < 9:
                g(f"v_add_f32 v{a+i-1}, 1.0, v{a+i-1}")
            if i < 8:
                g(f"v_exp_f32 v{a+i}, v{a+i}")
            if i >= 2:
                g(f"v_mul_f32 v{a+6+i}, v{a+6+i}, v{a+i-2}")
            if 1 <= i < 9:
                g(f"v_rcp_f32 v{a+i-1}, v{a+i-1}")
            if i >= 3 and i % 2:
                j = (i - 3) // 2
                g(f"v_cvt_pk_bf16_f32 v{a+j}, v{a+8+2*j}, v{a+9+2*j}")
    g(f"s_add_u32 s{sSo}, s{sHoff}, {t*112*1024}")
    g(f"buffer_store_dwordx4 {vr(a)}, v1, {srd(rWS)}, s{sSo} offen sc1", f"hst{t}")
    return g


def arrive(ts, wait=True):
    g = S()
    if wait:
        g("WAIT " + " ".join(f"hst{t}" for t in ts))
    g(f"s_mov_b64 exec, 1\nds_add_rtn_u32 v{vT+2}, v{vRA}, v{vOne} offset:{4*ts[0]}\ns_mov_b64 exec, -1")
    return g


def signal(ts):
    g = S()
    g(f"v_xor_b32 v{vT+3}, 7, v{vT+2}\nv_lshl_or_b32 v{vT+3}, v{vT+3}, 26, v{vFin}")
    for t in ts:
        g(f"s_add_u32 s{sSo}, s{sFin}, {t*1792}")
        g.append(flag_store(sSo, vT + 3))
    return g


def role_ffn():
    c = S()
    vW1, vW3, vXs, vWr, vXr = 2, 3, 4, 5, 6
    XF, ACC, ACC4, WF = 32, 64, 128, 144
    a, b, d, e = vT, vT + 1, vT + 2, vT + 3
    c(f"""
    s_mul_i32 s{sT0}, s{sXCD}, 20
    s_add_u32 s{sT0}, s{sT0}, s{sSLOT}
    s_cmp_ge_u32 s{sT0}, 154
    s_cbranch_scc1 L_janitor
    """)
    sdiv(c, sGRP, sRNG, sT0, 6, 160)
    c(f"s_sub_u32 s{sT1}, s{sT0}, 84\ns_max_i32 s{sT1}, s{sT1}, 0")
    sdiv(c, sT2, sT3, sT1, 5, 80)
    c(f"""
    s_add_u32 s{sT3}, s{sT3}, 6
    s_cmp_ge_u32 s{sT0}, 84
    s_cselect_b32 s{sGRP}, s{sT2}, s{sGRP}
    s_cselect_b32 s{sRNG}, s{sT3}, s{sRNG}
    """)
    mk_srd(c, rA, pW1, 448 * 3584)
    mk_srd(c, rB, pW3, 448 * 3584)
    c(f"""
    s_mul_i32 s{sWoff}, s{sW}, {4*3584}
    s_lshl_b32 s{sT0}, s{sGRP}, 8
    s_add_u32 s{sWoff}, s{sWoff}, s{sT0}
    s_mul_i32 s{sXoff}, s{sRNG}, {192*896}
    s_mul_i32 s{sT0}, s{sW}, {8*896}
    s_add_u32 s{sXoff}, s{sXoff}, s{sT0}
    v_lshrrev_b32 v{a}, 4, v0
    v_lshlrev_b32 v{b}, 6, v{a}
    v_and_b32 v{d}, 0xf0, v1
    v_xor_b32 v{b}, v{b}, v{d}
    v_mul_u32_u24 v{a}, 3584, v{a}
    v_add_u32 v{vW1}, v{a}, v{b}
    v_xor_b32 v{vW3}, 32, v{vW1}
    """)

    def dmas(s):
        g = []
        if s < 7:
            for j in (0, 8):
                g.append(dma(vXs, rX, sXk, 8 * j * 896, SL[s % 3] + 32768 + j * 1024, f"st{s}"))
                g.append(dma(vW1, rA, sWk, 4 * j * 3584, SL[s % 3] + j * 1024, f"st{s}"))
                g.append(dma(vW3, rB, sWk, 4 * j * 3584, SL[s % 3] + 16384 + j * 1024, f"st{s}"))
            g[0] = rot_bases(3584, s == 0).add(g[0])
        elif s == 7:
            for k in range(7):
                g.append(rot_bases(0).add(dma(vXs, rX, sXk, 128 * 896, XB + k * 8192, "st7")))
        return g

    for g in dmas(0):
        c.add(g)
    c(f"""
    s_mul_i32 s{sHoff}, s{sRNG}, {6*112}
    s_lshl_b32 s{sT0}, s{sGRP}, 3
    s_add_u32 s{sHoff}, s{sHoff}, s{sT0}
    s_add_u32 s{sHoff}, s{sHoff}, s{sW}
    s_mul_i32 s{sFin}, s{sRNG}, 84
    s_add_u32 s{sFin}, s{sFin}, s{sGRP}
    s_lshl_b32 s{sFin}, s{sFin}, 7
    s_add_u32 s{sFin}, s{sFin}, {hex(HF_OFF)}
    s_lshl_b32 s{sHoff}, s{sHoff}, 10
    v_lshlrev_b32 v{a}, 2, v0
    v_add_u32 v{a}, {CNT}, v{a}
    v_mov_b32 v{b}, 0
    ds_write_b32 v{a}, v{b}
    v_bfe_u32 v{a}, v0, 2, 2
    v_bfe_u32 v{b}, v0, 4, 1
    v_lshlrev_b32 v{d}, 6, v{a}
    v_lshl_add_u32 v{d}, v{b}, 5, v{d}
    v_and_b32 v{e}, 3, v0
    v_lshlrev_b32 v{e}, 3, v{e}
    s_lshl_b32 s{sT0}, s{sW}, 5
    v_add_u32 v{e}, s{sT0}, v{e}
    v_xor_b32 v{d}, v{d}, v{e}
    v_lshrrev_b32 v{e}, 5, v0
    v_lshl_add_u32 v{e}, v{e}, 3, v{a}
    v_lshl_add_u32 v{d}, v{e}, 8, v{d}
    v_lshl_add_u32 v{vWr}, v{b}, 14, v{d}
    """)
    x_rd(c, vXr, a, b)
    p2_setup(c)
    c("s_barrier")
    for g in dmas(1):
        c.add(g)

    def reads(g):
        ks, r = g % 4, S()
        for rd in range(2):
            r(f"ds_read_b64_tr_b16 {vr(WF+4*g+2*rd,2)}, v{vWr} offset:{(16*ks+4*rd)*256}")
        for t in range(4):
            r(f"ds_read_b128 {vr(XF+16*(g&1)+4*t)}, v{vXr+ks} offset:{32768+4096*t}")
        return r

    def mfmas(g):
        return [mfma(ACC + 16 * t, WF + 4 * g, XF + 16 * (g & 1) + 4 * t, g == 0) for t in range(4)]

    def rebase(s):
        new = XB if s == 7 else SL[s % 3]
        dd = (new - SL[(s - 1) % 3]) & 0xFFFFFFFF
        r = S()
        for v in ([vWr] if s < 7 else []) + [vXr + k for k in range(4)]:
            r(f"v_add_u32 v{v}, {hex(dd)}, v{v}")
        if s == 5:
            ready_issue(r)
        return r

    def read2(n):
        t, k = n // 28, n % 28
        return I(f"ds_read_b128 {vr(XF+4*(n%8))}, v{vXr+k%4} offset:{(k//4)*8192+t*4096}")

    main_loop(c, reads, mfmas, dmas, rebase, [read2(n) for n in range(4)])
    ready_check(c)
    c(f"v_mov_b32 v{vRA}, {CNT}")
    stamp(c, 3)
    c(f"s_cmp_eq_u32 s{sRNG}, 10\ns_cbranch_scc1 L_ffn_short")
    p2 = S()
    for n in range(56):
        t, k = n // 28, n % 28
        p2.append(mfma(ACC4 if t == 0 else ACC, WF + 4 * k, XF + 4 * (n % 8), k == 0))
        if n + 4 < 56:
            p2.append(read2(n + 4))
    fill = S()
    for t in (1, 0, 2, 3):
        fill.add(silu(ACC + 16 * t, t))
    fill.add(silu(ACC4, 4))
    p2 = weave_cost(p2, fill, 1, 56)
    at = {}

    def put(n, g):
        at.setdefault(n, S()).add(g)

    for p, n in enumerate((1, 5, 11, 16, 22, 27, 33, 38, 44, 49)):
        w = w2_dma(p)
        put(n, w[:-3])
        put(n + 2, w[-3:])
    for p, n in enumerate((15, 20, 26, 31, 36, 42, 47, 53)):
        put(n, w2_read(p))
    for n, t in ((29, 1), (40, 0), (51, 2)):
        put(n, arrive([t]))
        put(n + 2, signal([t]))
    c.add(place(p2, at))
    stamp(c, 4)
    c.add(w2_dma(10))
    c.add(sprinkle(silu(ACC, 5, True), [w2_dma(11), arrive([3]), signal([3])], 0.3, 1.0))
    c.add(w2_dma(12))
    c.add(w2_read(8))
    c.add(w2_read(9))
    c.add(w2_dma(13))
    c.add(arrive([4]))
    c.add(wo_dma(0, 4, "r9"))
    c.add(signal([4]))
    poll_issue(c, vFH, rWS, f"s{sFE}")
    c.add(arrive([5]))
    c.add(w2_read(10))
    c.add(w2_read(11))
    c.add(signal([5]))
    c.add(wo_dma(4, 8, "r11"))
    c("WAIT poll\ns_branch L_join")
    s = S()
    s("L_ffn_short:\ns_waitcnt lgkmcnt(0)\ns_nop 7")
    for p in range(4):
        s.add(w2_dma(p))
    for t in range(4):
        s.add(silu(ACC + 16 * t, t, True))
    s.add(arrive([0, 1, 2, 3]))
    s.add(signal([0, 1, 2, 3]))
    s("s_branch L_stage")
    return finish(c) + finish(s)


def janitor():
    c = S()
    c(f"""
    s_sub_u32 s{sRNG}, s{sT0}, 154
    s_lshl_b32 s{sT1}, s{sRNG}, 3
    s_add_u32 s{sGRP}, s{sT1}, s{sW}
    s_mul_i32 s{sT1}, s{sGRP}, 5120
    s_add_u32 s{sT1}, s{sT1}, {hex(HF_OFF)}
    s_add_u32 s{sT2}, s{sT1}, 4096
    v_mov_b32 v4, 0
    v_mov_b32 v5, 0
    v_mov_b32 v6, 0
    v_mov_b32 v7, 0
    """)
    for j in range(4):
        c(f"buffer_store_dwordx4 v[4:7], v1, {srd(rWS)}, s{sT1} offen offset:{1024*j} sc1")
    c(f"buffer_store_dwordx4 v[4:7], v1, {srd(rWS)}, s{sT2} offen sc1")
    p2_setup(c)
    c(f"""
    s_lshl_b32 s{sT0}, s{sRNG}, 2
    s_lshl_b32 s{sT1}, s{sW}, 12
    s_add_u32 s{sT0}, s{sT0}, s{sT1}
    s_waitcnt vmcnt(0)
    s_barrier
    buffer_store_dword v{vOne}, v{vFin}, {srd(rD)}, s{sT0} offen sc1
    v_mul_u32_u24 v2, 896, v0
    s_mul_i32 s{sT0}, s{sGRP}, {64*896}
    s_add_u32 s{sT0}, s{sT0}, 768
    buffer_load_dword v3, v2, {srd(rW2)}, s{sT0} offen
    buffer_load_dword v4, v2, {srd(rWO)}, s{sT0} offen
    """)
    for p in range(4):
        c.add(w2_dma(p))
    ready_issue(c)
    ready_check(c)
    c("s_branch L_stage")
    return finish(c)


def phi_loads(tmp, va, vb, shead):
    g = []
    for ks in range(2):
        for i in range(8):
            v = vb if (ks == 1 and i >= 4) else va
            g.append([I(f"buffer_load_ushort v{tmp+8*ks+i}, v{v}, {srd(rB)}, s{shead} offen offset:{(16*ks+8*(i>>2)+(i&3))*56}")])
    return g


def phi_pack(c, dst, tmp):
    for j in range(8):
        c(f"v_lshl_or_b32 v{dst+j}, v{tmp+2*j+1}, 16, v{tmp+2*j}")


def phi_addrs(c, va, vb, t0, t1):
    c(f"""
    v_and_b32 v{t0}, 31, v0
    v_subrev_u32 v{t1}, 2, v{t0}
    v_cmp_gt_u32 vcc, 28, v{t0}
    v_cndmask_b32 v{t1}, v{t1}, v{t0}, vcc
    v_lshlrev_b32 v{t1}, 1, v{t1}
    v_lshrrev_b32 v{va}, 5, v0
    v_mul_u32_u24 v{va}, 224, v{va}
    v_add_u32 v{va}, v{va}, v{t1}
    v_and_b32 v{t0}, 26, v{t0}
    v_mov_b32 v{t1}, {hex(OOB)}
    v_cmp_eq_u32 vcc, 26, v{t0}
    v_cndmask_b32 v{va}, v{va}, v{t1}, vcc
    v_cmp_lt_u32 vcc, 31, v0
    v_cndmask_b32 v{vb}, v{va}, v{t1}, vcc
    """)


def softmax_pair(c, acc, phi, PK, P, T, dst, filler=None, after=None):
    U = range(2)
    L = f"s[{sL2E}:{sL2E+1}]"
    for u in U:
        for j in range(8):
            c(f"v_cvt_pk_bf16_f32 v{PK+8*u+j}, v{acc[u]+2*j}, v{acc[u]+2*j+1}")
        c.append(mfma(P + 16 * u, phi[u], PK + 8 * u, True))
        c.append(mfma(P + 16 * u, phi[u] + 4, PK + 8 * u + 4))
    if filler:
        c.add(filler)
    for u in U:
        t, p = T + 4 * u, P + 16 * u
        c(f"v_max3_f32 v{t}, v{p}, v{p+1}, v{p+2}\nv_max3_f32 v{t+2}, -v{p}, -v{p+1}, -v{p+2}")
        for j in range(3, 13, 2):
            c(f"v_max3_f32 v{t}, v{t}, v{p+j}, v{p+j+1}\nv_max3_f32 v{t+2}, v{t+2}, -v{p+j}, -v{p+j+1}")
        c(f"v_max_f32 v{t}, v{t}, v{p+13}\nv_max_f32_e64 v{t+2}, v{t+2}, -v{p+13}")
    for op in ("v_permlane32_swap_b32 v{t}, v{t1}", "v_max_f32 v{t}, v{t}, v{t1}", "v_mul_f32_e64 v{t}, -s%d, v{t}" % sL2E,
               "v_mov_b32 v{t1}, v{t}", "v_permlane32_swap_b32 v{t}, v{t1}"):
        for u in U:
            c(op.format(t=T + 4 * u, t1=T + 4 * u + 2))
    for u in U:
        t, p, e = T + 4 * u, P + 16 * u, acc[u]
        for j in range(0, 14, 2):
            c(f"v_pk_fma_f32 {vr(e+j,2)}, {vr(p+j,2)}, {L}, {vr(t,2)} op_sel_hi:[1,0,0]")
            c(f"v_pk_fma_f32 {vr(p+j,2)}, {vr(p+j,2)}, {L}, {vr(t+2,2)} op_sel_hi:[1,0,0] neg_lo:[1,0,0] neg_hi:[1,0,0]")
    for u in U:
        p, e = P + 16 * u, acc[u]
        for j in range(14):
            c(f"v_exp_f32 v{e+j}, v{e+j}\nv_exp_f32 v{p+j}, v{p+j}")
    for j in range(2, 14, 2):
        for u in U:
            for sg, E in enumerate((acc[u], P + 16 * u)):
                s = T + 8 + 4 * u + 2 * sg
                c(f"v_pk_add_f32 {vr(s,2)}, {vr(E if j == 2 else s,2)}, {vr(E+j,2)}")
    for u in U:
        for sg in range(2):
            s = T + 8 + 4 * u + 2 * sg
            c(f"v_add_f32 v{T+4*u+2*sg}, v{s}, v{s+1}")
    for op in ("v_permlane32_swap_b32 v{t}, v{t1}", "v_add_f32 v{t}, v{t}, v{t1}", "v_rcp_f32 v{t}, v{t}",
               "v_mov_b32 v{t1}, v{t}", "v_permlane32_swap_b32 v{t}, v{t1}"):
        for u in U:
            c(op.format(t=T + 4 * u, t1=T + 4 * u + 2))
    for u in U:
        for sg, E in enumerate((acc[u], P + 16 * u)):
            for j in range(0, 14, 2):
                c(f"v_pk_mul_f32 {vr(E+j,2)}, {vr(E+j,2)}, {vr(T+4*u+2*sg,2)} op_sel_hi:[1,0]")
            D = dst(u, sg)
            for j in range(7):
                c(f"v_cvt_pk_bf16_f32 v{D+j}, v{E+2*j}, v{E+2*j+1}")
            c(f"v_mov_b32 v{D+7}, 0")
            if after:
                c.add(after(u, sg))


def role_attn(isq):
    c = S()
    vWs, vXs, vWa, vWb, vXr = 2, 4, 3, 5, 6
    vPa, vPb = 26, 27
    vGw, GW = 10, 20
    WB, XF, ACC, PHI, TMP = 32, 48, 64, 128, 160
    a, b, d, e = vT, vT + 1, vT + 2, vT + 3
    mk_srd(c, rA, pQKV, 448 * 2688)
    c(f"""
    s_lshr_b32 s{sRNG}, s{sXCD}, 2
    s_lshl_b32 s{sRNG}, s{sRNG}, 2
    s_and_b32 s{sT0}, s{sSLOT}, 3
    s_add_u32 s{sRNG}, s{sRNG}, s{sT0}
    s_and_b32 s{sGRP}, s{sXCD}, 3
    """)
    if not isq:
        c(f"""
        s_lshl_b32 s{sGRP}, s{sGRP}, 1
        s_sub_u32 s{sT0}, s{sSLOT}, 20
        s_lshr_b32 s{sT0}, s{sT0}, 2
        s_add_u32 s{sGRP}, s{sGRP}, s{sT0}
        """)
    else:
        c(f"s_mov_b32 s{sM0}, 0xf3ff3fff\ns_mov_b32 s{sM0+1}, 0xfff3ff3f")
        mk_srd(c, rG, pGATE, 896)
    c(f"""
    s_mul_i32 s{sWoff}, s{sW}, {4*2688}
    s_mul_i32 s{sT0}, s{sGRP}, {224 if isq else 112}
    s_add_u32 s{sWoff}, s{sWoff}, s{sT0}
    s_mul_i32 s{sXoff}, s{sRNG}, {256*896}
    s_mul_i32 s{sT0}, s{sW}, {8*896}
    s_add_u32 s{sXoff}, s{sXoff}, s{sT0}
    v_lshrrev_b32 v{a}, 4, v0
    v_lshlrev_b32 v{b}, 2, v{a}
    v_and_b32 v{d}, 15, v0
    v_xor_b32 v{b}, v{b}, v{d}
    v_mul_u32_u24 v{a}, 2688, v{a}
    """)
    if isq:
        c(f"""
        v_lshl_add_u32 v{vWs}, v{b}, 4, v{a}
        s_lshl_b32 s{sT0}, s{sW}, 3
        v_lshrrev_b32 v{a}, 3, v0
        v_add_u32 v{a}, s{sT0}, v{a}
        v_and_b32 v{b}, 1, v0
        v_lshlrev_b32 v{b}, 26, v{b}
        v_lshl_add_u32 v{b}, v{a}, 1, v{b}
        """)
        c(f"s_lshl_b32 s{sT0}, s{sCnt}, 7")
        for s in range(7):
            c(f"buffer_load_ushort v{GW+s if s < 6 else vGw+1}, v{b}, {srd(rG)}, s{sT0} offen")
            if s < 6:
                c(f"s_add_u32 s{sT0}, s{sT0}, 128\ns_cmp_eq_u32 s{sT0}, 896\ns_cselect_b32 s{sT0}, 0, s{sT0}")
        c(f"""
        v_and_b32 v{d}, 3, v{a}
        v_lshlrev_b32 v{d}, 6, v{d}
        v_and_b32 v{vGw}, 7, v0
        v_lshlrev_b32 v{vGw}, 2, v{vGw}
        v_add_u32 v{vGw}, 0xe0, v{vGw}
        v_xor_b32 v{vGw}, v{vGw}, v{d}
        v_lshl_add_u32 v{vGw}, v{a}, 8, v{vGw}
        v_add_u32 v{vGw+2}, {hex(SL[1])}, v{vGw}
        """)
    else:
        c(f"""
        v_lshrrev_b32 v{d}, 3, v{b}
        v_mul_u32_u24 v{d}, 896, v{d}
        v_and_b32 v{b}, 7, v{b}
        v_cmp_eq_u32 vcc, 7, v{b}
        v_lshl_add_u32 v{b}, v{b}, 4, v{d}
        v_add_u32 v{b}, 0x380, v{b}
        v_add_u32 v{vWs}, v{b}, v{a}
        v_mov_b32 v{b}, {hex(OOB)}
        v_cndmask_b32 v{vWs}, v{vWs}, v{b}, vcc
        """)

    def patch(s):
        src = GW + s if s < 6 else vGw + 1
        if s % 3 == 1:
            return [I(f"ds_write_b32 v{vGw+2}, v{src}")]
        return [I(f"ds_write_b32 v{vGw}, v{src} offset:{SL[s%3]}")]

    def dmas(s):
        g = []
        if s < 7:
            for j in (0, 8):
                g.append(dma(vWs, rA, sWk, 4 * j * 2688, SL[s % 3] + j * 1024, f"st{s}", sM0 if isq else None))
                for m in (0, 16):
                    g.append(dma(vXs, rX, sXk, 8 * (j + m) * 896, SL[s % 3] + 16384 + (j + m) * 1024, f"st{s}"))
            g[0] = rot_bases(2688, s == 0).add(g[0])
            if isq and s >= 2:
                g.append(patch(s))
        if s == 7:
            g += phi_loads(TMP, vPa, vPb, sHoff)
        if s == 8 and isq:
            g += phi_loads(TMP + 16, vPa, vPb, sFin)
        return g

    for g in dmas(0):
        c.add(g)
    mk_srd(c, rB, pPHI, 16 * 1568)
    if not isq:
        p2_setup(c)
    c(f"""
    s_lshr_b32 s{sSEL}, s{sW}, 2
    s_and_b32 s{sTG}, s{sW}, 3
    s_lshl_b32 s{sHD}, s{sGRP}, 1
    s_add_u32 s{sHD}, s{sHD}, s{sSEL}
    """)
    if isq:
        c(f"s_lshl_b32 s{sHD}, s{sHD}, 1")
    c(f"s_mul_i32 s{sHoff}, s{sHD}, 1568\ns_add_u32 s{sFin}, s{sHoff}, 1568")
    if not isq:
        kv_setup(c)
    c(f"s_lshl_b32 s{sT1}, s{sTG}, 13")
    x_rd(c, vXr, a, b, tokbase=sT1)
    phi_addrs(c, vPa, vPb, a, b)
    c(f"""
    v_bfe_u32 v{a}, v0, 2, 2
    v_bfe_u32 v{b}, v0, 4, 1
    v_and_b32 v{d}, 3, v0
    v_lshl_add_u32 v{b}, v{b}, 2, v{d}
    v_cmp_eq_u32 vcc, 7, v{b}
    v_lshlrev_b32 v{d}, 3, v{b}
    v_lshrrev_b32 v{e}, 5, v0
    v_lshl_add_u32 v{e}, v{e}, 3, v{a}
    v_lshlrev_b32 v{e}, 8, v{e}
    v_lshlrev_b32 v{a}, 6, v{a}
    s_mul_i32 s{sT0}, s{sSEL}, {112 if isq else 56}
    v_add_u32 v{vWa}, s{sT0}, v{d}
    """)
    if isq:
        c(f"""
        v_add_u32 v{vWb}, 56, v{vWa}
        s_lshl_b32 s{sT0}, s{sSEL}, 4
        s_sub_u32 s{sT0}, 248, s{sT0}
        s_sub_u32 s{sT1}, s{sT0}, 8
        v_mov_b32 v{d}, s{sT0}
        v_cndmask_b32 v{vWa}, v{vWa}, v{d}, vcc
        v_mov_b32 v{d}, s{sT1}
        v_cndmask_b32 v{vWb}, v{vWb}, v{d}, vcc
        """)
    else:
        c(f"""
        s_lshl_b32 s{sT0}, s{sSEL}, 3
        s_sub_u32 s{sT0}, 120, s{sT0}
        v_mov_b32 v{d}, s{sT0}
        v_cndmask_b32 v{vWa}, v{vWa}, v{d}, vcc
        v_add_u32 v{vWb}, 0x80, v{vWa}
        v_and_b32 v{d}, 31, v0
        v_cmp_lt_u32 vcc, 27, v{d}
        v_cndmask_b32_e64 v{ACC+32}, 0, 1.0, vcc
        """)
        for j in range(1, 32):
            c(f"v_mov_b32 v{ACC+32+j}, v{ACC+32}")
    c(f"""
    v_xor_b32 v{vWa}, v{vWa}, v{a}
    v_xor_b32 v{vWb}, v{vWb}, v{a}
    v_add_u32 v{vWa}, v{vWa}, v{e}
    v_add_u32 v{vWb}, v{vWb}, v{e}
    s_barrier
    """)
    for g in dmas(1):
        c.add(g)
    if isq:
        for s in range(2):
            c.add(patch(s))

    def reads(g):
        ks, r, o = g % 4, S(), 8 * (g & 1)
        for rd in range(2):
            r(f"ds_read_b64_tr_b16 {vr(WB+o+2*rd,2)}, v{vWa} offset:{(16*ks+4*rd)*256}")
        for t in range(2):
            r(f"ds_read_b128 {vr(XF+o+4*t)}, v{vXr+ks} offset:{16384+4096*t}")
        for rd in range(2):
            r(f"ds_read_b64_tr_b16 {vr(WB+o+4+2*rd,2)}, v{vWb} offset:{(16*ks+4*rd)*256}")
        return r

    def mfmas(g):
        o = 8 * (g & 1)
        m = [mfma(ACC + 16 * t, WB + o, XF + o + 4 * t, g == 0) for t in range(2)]
        if isq:
            m += [mfma(ACC + 32 + 16 * t, WB + o + 4, XF + o + 4 * t, g == 0) for t in range(2)]
        else:
            m += [mfma(ACC + 32 + 16 * t, XF + o + 4 * t, WB + o + 4) for t in range(2)]
        return m

    def rebase(s):
        dd = (SL[s % 3] - SL[(s - 1) % 3]) & 0xFFFFFFFF
        r = S()
        if s < 7:
            for v in [vWa, vWb] + [vXr + k for k in range(4)]:
                r(f"v_add_u32 v{v}, {hex(dd)}, v{v}")
        if s == 4:
            ready_issue(r)
        if s == 6:
            ready_check(r)
        return r

    pk = S()
    phi_pack(pk, PHI, TMP)
    main_loop(c, reads, mfmas, dmas, rebase, None if isq else pk)
    stamp(c, 3)
    if isq:
        c.add(pk)
    if isq:
        q_tail(c, ACC, PHI, TMP)
    else:
        kv_tail(c, ACC, PHI)
    return finish(c)


KW, KR, KV_, KB = 248, 252, 254, 255


def kv_setup(c):
    a, b, d, e = vT, vT + 1, vT + 2, vT + 3
    c(f"""
    s_lshl_b32 s{sT0}, s{sSEL}, 15
    s_lshl_b32 s{sT1}, s{sTG}, 12
    s_add_u32 s{sT0}, s{sT0}, s{sT1}
    s_add_u32 s{sT0}, s{sT0}, 98304
    v_bfe_u32 v{a}, v0, 1, 3
    v_lshrrev_b32 v{b}, 5, v0
    v_xor_b32 v{a}, v{a}, v{b}
    v_lshlrev_b32 v{a}, 3, v{a}
    v_and_b32 v{d}, 31, v0
    v_lshl_add_u32 v{a}, v{d}, 6, v{a}
    v_add_u32 v{KW}, s{sT0}, v{a}
    v_xor_b32 v{KW+1}, 16, v{KW}
    v_xor_b32 v{KW+2}, 32, v{KW}
    v_xor_b32 v{KW+3}, 48, v{KW}
    s_lshl_b32 s{sT0}, s{sTG}, 14
    s_add_u32 s{sT0}, s{sT0}, 98304
    v_bfe_u32 v{a}, v0, 2, 2
    v_lshl_add_u32 v{a}, v{b}, 2, v{a}
    v_lshrrev_b32 v{b}, 1, v{a}
    v_bfe_u32 v{d}, v0, 4, 1
    v_and_b32 v{e}, 3, v0
    v_lshl_add_u32 v{d}, v{d}, 2, v{e}
    v_xor_b32 v{b}, v{b}, v{d}
    v_lshlrev_b32 v{b}, 3, v{b}
    v_lshl_add_u32 v{a}, v{a}, 6, v{b}
    v_add_u32 v{KR}, s{sT0}, v{a}
    v_xor_b32 v{KR+1}, 32, v{KR}
    v_add_u32 v{KV_}, s{sL2}, v1
    s_lshr_b32 s{sT0}, s{sTG}, 1
    s_mul_i32 s{sT0}, s{sT0}, {4*RG}
    v_add_u32 v{KB}, s{sT0}, v1
    v_cmp_eq_u32 vcc, 1, v0
    v_mov_b32 v{a}, 0x8000
    s_lshl_b32 s{sT0}, s{sGRP}, 2
    s_add_u32 s{sT0}, s{sT0}, s{sTG}
    s_lshl_b32 s{sM0}, s{sT0}, 4
    s_add_u32 s{sM0}, s{sM0}, s{sRNG}
    s_lshl_b32 s{sM0}, s{sM0}, 10
    s_add_u32 s{sM0}, s{sM0}, {hex(KVP_OFF)}
    s_add_u32 s{sM0+1}, s{sM0}, 8192
    v_cndmask_b32 v{vFin}, v{vFin}, v{a}, vcc
    s_lshl_b32 s{sFin}, s{sT0}, 3
    s_add_u32 s{sFin}, s{sFin}, s{sRNG}
    s_lshl_b32 s{sFin}, s{sFin}, 7
    s_add_u32 s{sFin}, s{sFin}, {hex(KF_OFF)}
    """)


def kv_tail(c, ACC, PHI):
    PK, P, T = 136, 152, 32
    f = S()
    for t in range(2):
        A = ACC + 32 + 16 * t
        for j in range(8):
            f(f"v_cvt_pk_bf16_f32 v{A+j}, v{A+2*j}, v{A+2*j+1}")
            if j % 4 == 3:
                f(f"ds_write_b128 v{KV_}, {vr(A+j-3)} offset:{8192+2048*t+1024*(j//4)}")

    def dst(u, sg):
        return (ACC + 16 * u, P + 16 * u)[sg]

    def after(u, sg):
        g, E = S(), dst(u, sg)
        for q in range(4):
            g(f"ds_write_b64 v{KW+q}, {vr(E+2*q,2)} offset:{2048*u+16384*sg}")
        return g

    sm = S()
    softmax_pair(sm, [ACC, ACC + 16], [PHI, PHI], PK, P, T, dst, f, after)
    req = []
    for p in range(4):
        w = w2_dma(p)
        req += [w[:3], w[3:]]
    c.add(sprinkle(sm, req, 0.1, 0.7))
    c(f"WAIT lg*\ns_barrier\ns_cmp_ge_u32 s{sW}, 4\ns_cbranch_scc1 L_kv_rest")
    AF, BF, D, DEP = 64, 128, 32, 5

    def rd(n):
        g = S()
        for r in range(2):
            g(f"ds_read_b64_tr_b16 {vr(AF+4*n+2*r,2)}, v{KR+r} offset:{(16*n+8*r)*64}")
        g(f"ds_read_b128 {vr(BF+4*n)}, v{KB} offset:{RG*(n>>2)+8192+1024*(n&3)}")
        return g

    for n in range(DEP):
        c.add(rd(n))
    for n in range(16):
        c.append(mfma(D, AF + 4 * n, BF + 4 * n, n == 0))
        if n + DEP < 16:
            c.add(rd(n + DEP))
    for j in range(8):
        c(f"v_cvt_pk_bf16_f32 v{D+j}, v{D+2*j}, v{D+2*j+1}")
        if j % 4 == 3:
            c(f"buffer_store_dwordx4 {vr(D+j-3)}, v1, {srd(rWS)}, s{sM0+j//4} offen sc1")
    c("s_barrier\ns_waitcnt vmcnt(0)")
    c.append(flag_store(sFin))
    stamp(c, 4)
    c("s_branch L_stage\nL_kv_rest:\ns_barrier\ns_waitcnt vmcnt(0)")


def sel_matrix(c, dst, vi, mask, t):
    c(f"""
    v_and_b32 v{t}, 1, v{vi}
    v_lshlrev_b32 v{t}, 4, v{t}
    v_mov_b32 v{t+1}, 0x3f80
    v_lshlrev_b32 v{t}, v{t}, v{t+1}
    v_cndmask_b32_e64 v{t}, 0, v{t}, {mask}
    v_lshrrev_b32 v{t+1}, 1, v{vi}
    """)
    for j in range(4):
        c(f"v_cmp_eq_u32 vcc, {j}, v{t+1}\nv_cndmask_b32_e64 v{dst+j}, 0, v{t}, vcc")


def q_tail(c, ACC, PHI, TMP):
    EF, P, PK, T, G, SEL = 192, 144, 32, 48, 2, 176
    a, b, d, e = vT, vT + 1, vT + 2, vT + 3
    f = S()
    for t in range(2):
        f(f"""
        v_mul_f32_e64 v{G+t}, -s{sL2E}, v{ACC+16*t+12}
        v_exp_f32 v{G+t}, v{G+t}
        v_add_f32 v{G+t}, 1.0, v{G+t}
        v_rcp_f32 v{G+t}, v{G+t}
        """)
    phi_pack(f, PHI + 8, TMP + 16)
    softmax_pair(c, [ACC, ACC + 16], [PHI, PHI], PK, P, T, lambda u, sg: EF + 16 * u + 8 * sg, f)
    f = S()
    f(f"""
    s_lshl_b32 s{sT0}, s{sGRP}, 3
    s_add_u32 s{sT0}, s{sT0}, s{sW}
    s_lshl_b32 s{sT0}, s{sT0}, 14
    s_add_u32 s{sH}, s{sT0}, {hex(KVP_OFF)}
    s_add_u32 s{sH+1}, s{sH}, 8192
    s_lshr_b32 s{sT1}, s{sRNG}, 2
    s_lshl_b32 s{sT1}, s{sT1}, 5
    s_lshl_b32 s{sT2}, s{sGRP}, 3
    s_add_u32 s{sT1}, s{sT1}, s{sT2}
    s_add_u32 s{sT1}, s{sT1}, s{sW}
    s_lshl_b32 s{sT1}, s{sT1}, 10
    s_add_u32 s{sFE}, s{sT1}, {hex(KF_OFF)}
    v_and_b32 v{vRA}, 7, v0
    v_lshlrev_b32 v{vRA}, 7, v{vRA}
    v_bfe_u32 v{a}, v0, 3, 1
    v_and_b32 v{b}, 3, v0
    v_lshl_add_u32 v8, v{a}, 2, v{b}
    v_bfe_u32 v{a}, v0, 2, 1
    v_bfe_u32 v{b}, v0, 4, 2
    v_lshlrev_b32 v{a}, 1, v{a}
    v_xor_b32 v{a}, v{a}, v{b}
    v_cmp_eq_u32 s[{sM0}:{sM0+1}], 0, v{a}
    v_cmp_eq_u32 s[{sM1}:{sM1+1}], 1, v{a}
    """)
    sel_matrix(f, SEL, 8, f"s[{sM0}:{sM0+1}]", d)
    sel_matrix(f, SEL + 4, 8, f"s[{sM1}:{sM1+1}]", d)
    softmax_pair(c, [ACC + 32, ACC + 48], [PHI + 8, PHI + 8], PK, P, T, lambda u, sg: EF + 32 + 16 * u + 8 * sg, f)
    c(f"""
    s_lshl_b32 s{sT1}, s{sW}, 11
    s_add_u32 s{sT1}, s{sT1}, 49152
    v_add_u32 v6, s{sT1}, v1
    s_lshl_b32 s{sT1}, s{sSEL}, 13
    s_add_u32 s{sT1}, s{sT1}, 49152
    v_add_u32 v7, s{sT1}, v1
    s_lshl_b32 s{sT0}, s{sRNG}, 2
    s_add_u32 s{sT0}, s{sT0}, s{sTG}
    s_lshl_b32 s{sT1}, s{sT0}, 16
    s_lshl_b32 s{sT2}, s{sHD}, 11
    s_add_u32 s{sT1}, s{sT1}, s{sT2}
    s_add_u32 s{sO}, s{sT1}, {hex(O_OFF)}
    s_add_u32 s{sO+1}, s{sO}, 32768
    s_lshl_b32 s{sFin}, s{sT0}, 3
    s_add_u32 s{sFin}, s{sFin}, s{sGRP}
    s_lshl_b32 s{sFin}, s{sFin}, 1
    s_add_u32 s{sFin}, s{sFin}, s{sSEL}
    s_lshl_b32 s{sFin}, s{sFin}, 7
    s_add_u32 s{sFin}, s{sFin}, {hex(OF_OFF)}
    s_lshl_b32 s{sT0}, s{sT0}, 11
    s_lshl_b32 s{sT3}, s{sHD}, 6
    s_add_u32 s{sT0}, s{sT0}, s{sT3}
    s_add_u32 s{sT0}, s{sT0}, {hex(GC_OFF)}
    v_cmp_eq_u32 vcc, 1, v0
    v_mov_b32 v{a}, 0x400
    v_cndmask_b32 v{vFin}, v{vFin}, v{a}, vcc
    v_cmp_lt_u32 s[{sM1}:{sM1+1}], 31, v0
    v_and_b32 v{a}, 31, v0
    v_lshlrev_b32 v{a}, 2, v{a}
    v_mov_b32 v{b}, {hex(OOB)}
    v_cndmask_b32 v{a}, v{b}, v{a}, s[{sM1}:{sM1+1}]
    """)
    for t in range(2):
        c(f"v_sub_f32 v{4+t}, 1.0, v{G+t}\nbuffer_store_dword v{4+t}, v{a}, {srd(rWS)}, s{sT0} offen offset:{1024*t} sc1")
    stamp(c, 4)
    poll_issue(c, vRA, rWS, f"s{sFE}")
    poll_check(c, vRA, rWS, f"s{sFE}")
    stamp(c, 5)
    LD, D, KF = 64, 144, 32
    for n in range(16):
        ks, p = n >> 3, n & 7
        if p == 4:
            c(f"s_add_u32 s{sH+ks}, s{sH+ks}, 4096")
        c(f"buffer_load_dwordx4 {vr(LD+4*n)}, v1, {srd(rWS)}, s{sH+ks} offen offset:{1024*(p%4)} sc1")
    for n in range(16):
        c.append(mfma(D, SEL + 4 * (n >> 3), LD + 4 * n, n == 0))
    for j in range(8):
        c(f"v_cvt_pk_bf16_f32 v{D+j}, v{D+2*j}, v{D+2*j+1}")
    for ks in range(2):
        c(f"ds_write_b128 v6, {vr(D+4*ks)} offset:{1024*ks}")
    c("WAIT lg*\ns_barrier")
    stamp(c, 6)
    for n in range(8):
        c(f"ds_read_b128 {vr(KF+4*n)}, v7 offset:{1024*n}")
    m = S()
    for u in range(4):
        for k in range(4):
            m.append(mfma(64 + 16 * u, KF + 16 * (u >> 1) + 4 * k, EF + 16 * u + 4 * k, k == 0))

    def scale(u):
        g, N, t = S(), 64 + 16 * u, u & 1
        g(f"""
        v_add_f32 v{a}, 0x358637bd, v{N+12}
        v_rcp_f32 v{a}, v{a}
        v_mul_f32 v{a}, v{a}, v{G+t}
        v_mov_b32 v{b}, v{a}
        v_permlane32_swap_b32 v{a}, v{b}
        """)
        for j in range(16):
            g(f"v_mul_f32 v{N+j}, v{N+j}, v{b}")
        for j in range(8):
            g(f"v_cvt_pk_bf16_f32 v{N+j}, v{N+2*j}, v{N+2*j+1}")
        for j in (6, 7):
            g(f"v_cndmask_b32_e64 v{N+j}, v{N+j}, 0, s[{sM1}:{sM1+1}]")
        for ks in range(2):
            g(f"buffer_store_dwordx4 {vr(N+4*ks)}, v1, {srd(rWS)}, s{sO+t} offen offset:{2048*(u>>1)+1024*ks} sc1")
        return g

    m = weave_cost(m, scale(0).add(scale(1)), 6, 16)
    c.add(m)
    c.add(scale(2))
    c.add(scale(3))
    stamp(c, 7)
    c("s_waitcnt vmcnt(0)")
    c.append(flag_store(sFin))
    stamp(c, 8)
    c("s_branch L_fin")


def stage_rest():
    c = S()
    if PRIO:
        c("s_setprio 0")
    c.add(w2_dma(4))
    c.add(w2_dma(5))
    for p in range(12):
        c.add(w2_read(p))
        if 1 <= p <= 8:
            c.add(w2_dma(p + 5))
        if p == 10:
            c.add(wo_dma(0, 4, "r9"))
            poll_issue(c, vFH, rWS, f"s{sFE}")
    c.add(wo_dma(4, 8, "r11"))
    c("WAIT poll")
    return finish(c)


def phase2():
    c = S()
    SEL, G = 248, 252
    a, b, d = vT, vT + 1, vT + 2
    if PRIO:
        c("s_setprio 0")
    stamp(c, 6)
    poll_check(c, vFH, rWS, f"s{sFE}")
    stamp(c, 7)

    def hload(n):
        g = S()
        if n < 28:
            tt, p = n // 14, n % 14
            if p and p % 4 == 0:
                g(f"s_add_u32 s{sH+tt}, s{sH+tt}, 4096")
            g(f"buffer_load_dwordx4 {vr(HR+4*(n%NR))}, v1, {srd(rWS)}, s{sH+tt} offen offset:{1024*(p%4)} sc1")
        else:
            tt, q = (n - 28) // 4, (n - 28) % 4
            g(f"buffer_load_dwordx4 {vr(HR+4*(n%NR))}, v1, {srd(rWS)}, s{sO+tt} offen offset:{1024*q} sc1")
        return g

    for n in range(PD):
        c.add(hload(n))
    for p in (12, 13):
        c.add(w2_read(p))
    c(f"""
    v_and_b32 v2, 7, v0
    v_bfe_u32 v{a}, v0, 3, 2
    v_lshrrev_b32 v{b}, 5, v0
    v_cmp_eq_u32 s[{sM0}:{sM0+1}], v{a}, v{b}
    v_add_u32 v3, s{sL2}, v1
    v_add_u32 v4, s{sLw}, v1
    v_add_u32 v5, {4*RG}, v4
    v_and_b32 v{a}, 31, v0
    v_mul_u32_u24 v{a}, 896, v{a}
    v_lshl_add_u32 v6, v{b}, 4, v{a}
    """)
    sel_matrix(c, SEL, 2, f"s[{sM0}:{sM0+1}]", d)

    def pack(tt):
        g = S()
        for cc in range(2):
            A = ACC2[tt][cc]
            for j in range(8):
                g(f"v_cvt_pk_bf16_f32 v{A+j}, v{A+2*j}, v{A+2*j+1}")
                if j % 4 == 3:
                    g(f"ds_write_b128 v3, {vr(A+j-3)} offset:{1024*(4*tt+2*cc+j//4)}")
        return g

    def gscale(tt):
        g = S()
        for cc in range(2):
            for j in range(16):
                g(f"v_mul_f32 v{ACC2[tt][cc]+j}, v{ACC2[tt][cc]+j}, v{G+tt}")
        return g

    def step(n):
        g = S()
        tt, p = (n // 14, n % 14) if n < 28 else ((n - 28) // 4, 14 + (n - 28) % 4)
        for cc in range(2):
            g.append(mfma(ACC2[tt][cc], WREG[p] + 4 * cc, HR + 4 * (n % NR), p == 0))
        return g

    def gload():
        g = S()
        for tt in range(2):
            g(f"buffer_load_dword v{G+tt}, v{vGC}, {srd(rWS)}, s{sG+tt} offen sc1")
        return g

    NC = 28 - PD + 2
    for n in range(NC):
        c.add(step(n))
        if n == 20:
            for p in range(14, 18):
                c.add(w2_read(p))
        if n + PD == 11:
            poll_issue(c, vFH, rWS, f"s{sFL}")
        if n + PD == 14:
            poll_check(c, vFH, rWS, f"s{sFL}")
            stamp(c, 8)
        if n + PD == 25:
            poll_issue(c, vFO, rWS, f"s{sFO}")
        if n + PD < 28:
            c.add(hload(n + PD))
    c(f"v_cmp_eq_u32 vcc, 0, v{vPoll}\ns_cbranch_vccnz L_o_late")
    late = S()
    late("L_o_late:")
    for n in range(NC, 28):
        late(f"s_waitcnt vmcnt({27-n})")
        late.add(step(n))
    poll_check(late, vFO, rWS, f"s{sFO}")
    stamp(late, 9)
    late.add(gload())
    for k in range(28, 36):
        late.add(hload(k))
    late("s_branch L_o_join")
    stamp(c, 9)
    c.add(gload())
    k = 28
    for n in range(NC, 28):
        while k < 36 and k - NR < n:
            c.add(hload(k))
            k += 1
        c.add(step(n))
    assert k == 36
    c("L_o_join:")
    c.add(gscale(0))
    m = S()
    for n in range(28, 32):
        m.add(step(n))
    c.add(weave_cost(m, gscale(1), 0, 8))
    m = S()
    for n in range(32, 36):
        m.add(step(n))
    c.add(weave_cost(m, pack(0), 3, 8))
    stamp(c, 10)
    c.add(pack(1))
    c("WAIT lg*\ns_barrier")
    for src in range(8):
        c(f"ds_read_b128 {vr(HR+4*src)}, v{4+(src>>2)} offset:{RG*(src&3)}")
    for src in range(8):
        c.append(mfma(160, SEL, HR + 4 * src, src == 0))
    for j in range(4):
        c(f"v_cvt_pk_bf16_f32 v{160+j}, v{160+2*j}, v{160+2*j+1}")
    c(f"buffer_store_dwordx4 v[160:163], v6, {srd(rOUT)}, s{sOut} offen")
    return finish(late), finish(c)


KD = """.section .rodata,"a"
.p2align 6
.amdhsa_kernel {name}
  .amdhsa_next_free_vgpr 256
  .amdhsa_next_free_sgpr 102
  .amdhsa_accum_offset 256
  .amdhsa_group_segment_fixed_size 0
  .amdhsa_kernarg_size 96
  .amdhsa_user_sgpr_count 2
  .amdhsa_user_sgpr_kernarg_segment_ptr 1
  .amdhsa_system_sgpr_workgroup_id_x 1
.end_amdhsa_kernel
.text
"""


def kern(name, body):
    return f".globl {name}\n.p2align 8\n.type {name},@function\n{name}:\n{body}" + KD.format(name=name)


def finale():
    c = S()
    if STAMPS:
        c("s_waitcnt vmcnt(0)\ns_memrealtime s[100:101]\ns_waitcnt lgkmcnt(0)")
        for k in range(12):
            c(f"v_writelane_b32 v2, s{89+k}, {k}")
        c(f"""
        s_lshl_b32 s{sT0}, s2, 3
        s_add_u32 s{sT0}, s{sT0}, s{sW}
        s_lshl_b32 s{sT0}, s{sT0}, 6
        s_add_u32 s{sT0}, s{sT0}, {hex(ST_OFF)}
        v_lshlrev_b32 v3, 2, v0
        s_mov_b64 exec, 0xfff
        buffer_store_dword v2, v3, {srd(rWS)}, s{sT0} offen
        """)
    return finish(c)


def build():
    k = S()
    if STAMPS:
        for j in range(89, 100):
            k(f"s_mov_b32 s{j}, 0")
    head(k, "L_end")
    k(f"s_cmp_ge_u32 s{sSLOT}, 28\ns_cbranch_scc1 L_q\ns_cmp_ge_u32 s{sSLOT}, 20\ns_cbranch_scc1 L_kv")
    t = finish(k) + role_ffn()
    t += "L_janitor:\n" + janitor()
    t += "L_q:\n" + role_attn(True)
    late, p2 = phase2()
    t += late + "L_kv:\n" + role_attn(False)
    t += "L_stage:\n" + stage_rest()
    t += "L_join:\n" + p2 + "L_fin:\n" + finale() + "L_end:\n    s_endpgm\nL_code_end:\n"
    top = "; @launch grid=(256,1,1) block=(512,1,1) lds=163840\n"
    return top + '.amdgcn_target "amdgcn-amd-amdhsa--gfx950"\n.text\n' + kern(NAME + "_kernel", t)


if __name__ == "__main__":
    STAMPS = "stamps" in sys.argv
    PREF = "nopref" not in sys.argv
    for arg in sys.argv[2:]:
        if "=" in arg:
            k, v = arg.split("=")
            globals()[k] = int(v)
    open(sys.argv[1], "w").write(build())
```

```python
import amp, gen5 as G
G.STAMPS = True
N = G.NAME + "_kernel"
base = G.build().split("\n", 1)[1]
main = f"; @launch kernel={N} grid=(256,1,1) block=(512,1,1) lds=163840\n"
ampl = "; @launch kernel=amp_kernel grid=(1,1,1) block=(64,1,1) lds=0\n"
pre = "; @launch kernel=pre_kernel grid=(1,1,1) block=(64,1,1) lds=0\n"
entry = base.replace(f"{N}:\n", f"{N}:\n    s_memrealtime s[98:99]\n    s_waitcnt lgkmcnt(0)\n    s_mov_b32 s88, s98\n", 1)
entry = entry.replace("s_mov_b32 s89, s100", "s_mov_b32 s89, s88\n    s_mov_b32 s94, s100", 1).replace("s_mov_b32 s94, s100\n    buffer_load_dwordx4 v[64:67]", "buffer_load_dwordx4 v[64:67]")
open("an_1.s", "w").write(main + ampl + entry + G.kern("amp_kernel", amp.amp_kernel(5, 0, 28, "avg", 20)))
open("an_2.s", "w").write(main + ampl + entry + G.kern("amp_kernel", amp.amp_kernel(0, 0, 32, "max", 20)))
k = amp.amp_kernel(11, 0, 32, "max", 1)
k = k.replace("    s_load_dwordx2 s[4:5], s[0:1], 88\n", "    s_memrealtime s[30:31]\n    s_load_dwordx2 s[4:5], s[0:1], 88\n")
k = k.replace("    s_min_u32 s12, s12, 100000\n", "    s_sub_u32 s30, s30, s10\n    s_sub_u32 s12, s30, s12\n    s_mul_i32 s12, s12, 20\n    s_min_u32 s12, s12, 100000\n")
open("an_3.s", "w").write(main + ampl + base + G.kern("amp_kernel", k))
prek = """    s_cmp_ge_u32 s2, 1
    s_cbranch_scc1 Lp_x
    s_load_dwordx2 s[4:5], s[0:1], 88
    s_waitcnt lgkmcnt(0)
    s_mov_b32 s6, 0xA00000
    s_mov_b32 s7, 0x20000
    s_memrealtime s[8:9]
    s_waitcnt lgkmcnt(0)
    v_mov_b32 v1, s8
    v_mov_b32 v2, 0x9F8000
    buffer_store_dword v1, v2, s[4:7], 0 offen
Lp_x:
    s_endpgm
"""
k = amp.amp_kernel(0, 0, 32, "max", 1)
k = k.replace("    s_min_u32 s12, s12, 100000\n", "    v_mov_b32 v2, 0x9F8000\n    buffer_load_dword v1, v2, s[4:7], 0 offen\n    s_waitcnt vmcnt(0)\n    v_readfirstlane_b32 s30, v1\n    s_nop 3\n    s_sub_u32 s12, s10, s30\n    s_mul_i32 s12, s12, KK\n    s_min_u32 s12, s12, 100000\n")
open("an_4.s", "w").write(pre + main + ampl + entry + G.kern("amp_kernel", k.replace("KK", "20")) + G.kern("pre_kernel", prek))
open("an_5.s", "w").write(pre + main + ampl + entry + G.kern("amp_kernel", k.replace("KK", "0")) + G.kern("pre_kernel", prek))
open("an_0.s", "w").write(main + ampl + entry + G.kern("amp_kernel", amp.amp_kernel(5, 0, 28, "avg", 0)))
```
